```python
import torch

def _softmax(x, axis=-1):
    return torch.softmax(x, dim=axis)
def _gelu(x):
    return torch.nn.functional.gelu(x, approximate="tanh")
def _silu(x):
    return torch.nn.functional.silu(x)
def _sigmoid(x):
    return torch.sigmoid(x)
def _layernorm(x, axis=-1, eps=1e-5):
    m = x.mean(dim=axis, keepdim=True)
    v = x.var(dim=axis, keepdim=True, unbiased=False)
    return (x - m) / torch.sqrt(v + eps)
def _scatter_add(tgt, idx, src, axis=0):
    return tgt.clone().index_add_(axis, idx, src)
def _segment_sum(src, seg, n):
    out = torch.zeros((n,) + src.shape[1:], dtype=src.dtype)
    return out.index_add_(0, seg, src)
def _pad(x, pw):
    flat = tuple(v for pair in reversed(pw) for v in pair)
    return torch.nn.functional.pad(x, flat)

kernel_name = 'recurrent_scan__ssm_conv_s4d__dense_activation_gelu__prompt'

def setup_inputs():

    _w = (lambda a: (lambda t: t.to(torch.bfloat16) if t.is_floating_point() else t)(torch.as_tensor(a)))
    def _A_setup():
        Bsz, L, D, N = 1, 2048, 512, 128
        return {
            "u": _w((lambda *s: torch.randn(*s, dtype=torch.bfloat16) * 0.05)(Bsz, L, D)),
            "log_A_real": _w((lambda *s: torch.randn(*s, dtype=torch.bfloat16) * 6.4)(D, N) * 0.5),
            "A_imag": _w((lambda *s: torch.randn(*s, dtype=torch.bfloat16) * 0.2)(D, N) * 3.14),
            "C_real": _w((lambda *s: torch.randn(*s, dtype=torch.bfloat16) * 0.4)(D, N) / N ** 0.5),
            "C_imag": _w((lambda *s: torch.randn(*s, dtype=torch.bfloat16) * 0.4)(D, N) / N ** 0.5),
            "log_dt": _w((lambda *s: torch.randn(*s, dtype=torch.bfloat16) * 0.2)(D) * 0.5 - 4.0),
            "D_skip": _w((lambda *s: torch.randn(*s, dtype=torch.bfloat16) * 0.2)(D)),
        }
    _A_in = _A_setup()

    def _B_setup():
        B, S, D, F = 1, 2048, 512, 1792
        return {
            "x": _w((lambda *s: torch.randn(*s, dtype=torch.bfloat16) * 0.05)(B, S, D)),
            "w1": _w((lambda *s: torch.randn(*s, dtype=torch.bfloat16) * 0.8)(D, F) * (D ** -0.5)),
            "b1": _w((lambda *s: torch.randn(*s, dtype=torch.bfloat16) * 0.1)(F) * 0.01),
            "w2": _w((lambda *s: torch.randn(*s, dtype=torch.bfloat16) * 0.1)(F, D) * (F ** -0.5)),
            "b2": _w((lambda *s: torch.randn(*s, dtype=torch.bfloat16) * 0.1)(D) * 0.01),
        }
    _B_in = _B_setup()

    return {
        "A_u": _A_in["u"],
        "A_log_A_real": _A_in["log_A_real"],
        "A_A_imag": _A_in["A_imag"],
        "A_C_real": _A_in["C_real"],
        "A_C_imag": _A_in["C_imag"],
        "A_log_dt": _A_in["log_dt"],
        "A_D_skip": _A_in["D_skip"],
        "B_x": _B_in["x"],
        "B_w1": _B_in["w1"],
        "B_b1": _B_in["b1"],
        "B_w2": _B_in["w2"],
        "B_b2": _B_in["b2"],
    }

def reference(A_u, A_log_A_real, A_A_imag, A_C_real, A_C_imag, A_log_dt, A_D_skip, B_x, B_w1, B_b1, B_w2, B_b2):
    def _A_ref(u, log_A_real, A_imag, C_real, C_imag, log_dt, D_skip):
        L = u.shape[1]
        dt = torch.exp(log_dt)
        A = -torch.exp(log_A_real) + 1j * A_imag
        C = (C_real + 1j * C_imag) * dt[:, None]
        pos = (lambda x, dt: x.to(dt))(torch.arange(L), log_dt.dtype)
        P = torch.exp((A * dt[:, None])[:, :, None] * pos[None, None, :])
        K = 2.0 * torch.einsum("dn,dnl->dl", C, P).real
        L2 = 2 * L
        u_t = (lambda x, *d: x.permute(*d))(u, 0, 2, 1)
        Kf = (lambda x, *a, **k: torch.fft.rfft(x.float(), *a, **k))(K, L2)
        Uf = (lambda x, *a, **k: torch.fft.rfft(x.float(), *a, **k))(u_t, L2)
        y = (lambda x, *a, **k: torch.fft.irfft(x, *a, **k).to(torch.bfloat16))(Uf * Kf[None, :, :], L2)[:, :, :L]
        y = (lambda x, *d: x.permute(*d))(y, 0, 2, 1)
        return y + u * D_skip[None, None, :]

    def _B_ref(x, w1, b1, w2, b2):
        h = torch.einsum("bsd,df->bsf", x, w1) + b1
        h = _gelu(h)
        return torch.einsum("bsf,fd->bsd", h, w2) + b2

    x = A_u
    xn = _layernorm(x, axis=-1)
    s = _A_ref(xn, A_log_A_real, A_A_imag, A_C_real, A_C_imag, A_log_dt, A_D_skip)
    g = _silu(_B_ref(xn, B_w1, B_b1, B_w2, B_b2))
    return x + s * g
```

```python
import re

TRANS = {"v_exp_f32", "v_log_f32", "v_rcp_f32", "v_rsq_f32", "v_sqrt_f32", "v_sin_f32", "v_cos_f32",
         "v_rcp_iflag_f32", "v_exp_f16", "v_log_f16", "v_rcp_f16", "v_rsq_f16", "v_sqrt_f16"}

_REG = re.compile(r"^(-|\|)?(abs\()?([vsa])(\d+|\[(\d+):(\d+)\])\)?\|?$")


def regs_of(tok):
    tok = tok.strip()
    if tok in ("vcc", "vcc_lo", "vcc_hi"):
        return [("s", "vcc")]
    if tok in ("exec",):
        return [("s", "exec")]
    if tok == "m0":
        return [("s", "m0")]
    m = _REG.match(tok)
    if not m:
        return []
    kind = m.group(3)
    if m.group(5) is not None:
        return [(kind, i) for i in range(int(m.group(5)), int(m.group(6)) + 1)]
    return [(kind, int(m.group(4)))]


def split_ops(s):
    out, depth, cur = [], 0, ""
    for ch in s:
        if ch in "[(":
            depth += 1
        if ch in "])":
            depth -= 1
        if ch == "," and depth == 0:
            out.append(cur.strip()); cur = ""
        else:
            cur += ch
    if cur.strip():
        out.append(cur.strip())
    return out


def mfma_passes(mn):
    if "32x32x16" in mn or "32x32x8" in mn or "32x32x32" in mn:
        return 8
    if "16x16x32" in mn or "16x16x16" in mn or "16x16x64" in mn:
        return 4
    if "32x32x2" in mn:
        return 16
    if "16x16x4" in mn:
        return 8
    raise ValueError(mn)


class Asm:
    def __init__(self):
        self.lines = []
        self.hist = []
        self.maxv = -1
        self.maxs = -1

    def raw(self, s):
        self.lines.append(s)

    def label(self, name):
        self.lines.append(f"{name}:")

    def barrier_hazards(self, n=16):
        self.emit(f"s_nop {n - 1}" if n <= 16 else "s_nop 15")

    def _parse(self, text):
        t = text.split(";")[0].strip()
        parts = t.split(None, 1)
        mn = parts[0]
        rest = parts[1] if len(parts) > 1 else ""
        ops = split_ops(rest)
        mods = []
        if ops:
            last = ops[-1].split()
            if len(last) > 1:
                ops[-1] = last[0]
                mods = last[1:]
        base = re.sub(r"_(e32|e64|dpp|sdwa)$", "", mn)
        info = dict(mn=base, dst=[], src=[], kind="other", dpp=mn.endswith("_dpp") or any(
            m.startswith(("quad_perm", "row_", "wave_")) for m in mods), mods=mods, ws=1)
        R = [regs_of(o) for o in ops]
        flat = lambda L: [r for x in L for r in x]
        if base.startswith("v_mfma"):
            info.update(kind="mfma", dst=R[0], src=flat(R[1:]), srcab=flat(R[1:3]), srcc=R[3],
                        passes=mfma_passes(base))
        elif base.startswith("v_"):
            info["kind"] = "trans" if base in TRANS else "valu"
            if base.startswith("v_cmp"):
                info.update(dst=R[0], src=flat(R[1:]))
            elif "permlane" in base and "swap" in base:
                info.update(dst=flat(R), src=flat(R), perm=True)
            elif base in ("v_readfirstlane_b32", "v_readlane_b32"):
                info.update(dst=R[0], src=flat(R[1:]), rl=True)
            elif base in ("v_add_co_u32", "v_sub_co_u32", "v_addc_co_u32", "v_subb_co_u32"):
                info.update(dst=R[0] + R[1], src=flat(R[2:]))
            elif base.startswith(("v_fmac", "v_pk_fmac", "v_dot2c")):
                info.update(dst=R[0], src=flat(R))
            else:
                info.update(dst=R[0], src=flat(R[1:]))
                if base == "v_cndmask_b32" and len(ops) == 3:
                    info["src"] = info["src"] + [("s", "vcc")]
        elif base.startswith("ds_"):
            info["kind"] = "ds"
            if base.startswith(("ds_read", "ds_bpermute", "ds_permute", "ds_swizzle")):
                info.update(dst=R[0], src=flat(R[1:]))
            else:
                info.update(src=flat(R))
        elif base.startswith(("buffer_", "global_")):
            info["kind"] = "vmem"
            lds = "lds" in mods
            if "load" in base and not lds:
                info.update(dst=R[0], src=flat(R[1:]))
            else:
                info.update(src=flat(R))
            if lds:
                info["dma"] = True
            if "store" in base and ("x4" in base or "x3" in base):
                info["widedata"] = R[0] if base.startswith("buffer") else R[1]
        elif base.startswith("s_"):
            info["kind"] = "salu"
            if base == "s_nop":
                info["ws"] = int(ops[0], 0) + 1
            elif base.startswith(("s_cmp", "s_waitcnt", "s_barrier", "s_branch", "s_cbranch", "s_endpgm",
                                  "s_setprio", "s_sleep")):
                info.update(src=flat(R))
            else:
                info.update(dst=R[0] if R else [], src=flat(R[1:]))
        for k, i in info["dst"] + info["src"]:
            if k == "v" and isinstance(i, int):
                self.maxv = max(self.maxv, i)
            if k == "s" and isinstance(i, int):
                self.maxs = max(self.maxs, i)
        return info

    def _need(self, cur):
        need = 0
        dist = 0
        for p in reversed(self.hist):
            if dist >= 24:
                break
            pd = set(p["dst"])
            cs, cd = set(cur["src"]), set(cur["dst"])
            req = 0
            pk, ck = p["kind"], cur["kind"]
            pvalu = pk in ("valu", "trans")
            cvalu = ck in ("valu", "trans")
            vhit = {r for r in pd & cs if r[0] in "va"}
            shit = {r for r in pd & cs if r[0] == "s"}
            if pvalu and vhit:
                if cvalu and (cur.get("dpp") or cur.get("perm")):
                    req = max(req, 2)
                if ck == "mfma":
                    req = max(req, 2)
                if cur.get("rl"):
                    req = max(req, 1)
                if pk == "trans" and ck == "valu":
                    req = max(req, 1)
                if pk == "trans" and ck in ("mfma",):
                    req = max(req, 2)
            if pvalu and shit:
                if cvalu:
                    req = max(req, 4 if cur.get("rl") else 2)
                if ck == "vmem":
                    req = max(req, 5)
                if ck == "salu":
                    req = max(req, 1)
            if pk == "mfma":
                n = {2: 5, 4: 8, 8: 12, 16: 20}[p["passes"]]
                if ck == "mfma":
                    if pd & set(cur["srcab"]):
                        req = max(req, n)
                    cc = set(cur["srcc"])
                    if pd & cc:
                        if pd == cc and p["passes"] == cur["passes"]:
                            pass
                        else:
                            req = max(req, n - 2)
                    if (pd & cd) and not (pd == cd):
                        req = max(req, n)
                elif (pd & cs) or (pd & cd):
                    req = max(req, n)
                if cvalu and set(p["srcc"]) & cd:
                    req = max(req, {2: 1, 4: 3, 8: 7, 16: 15}[p["passes"]])
            if p.get("widedata") and cvalu and set(p["widedata"]) & cd:
                req = max(req, 2)
            if pk == "salu" and ("s", "m0") in pd and cur.get("dma"):
                req = max(req, 1)
            if req > dist:
                need = max(need, req - dist)
            dist += p["ws"]
        return need

    def emit(self, text):
        for line in text.strip("\n").split("\n"):
            s = line.strip()
            if not s or s.startswith(";"):
                if s:
                    self.lines.append("    " + s)
                continue
            if s.endswith(":") and " " not in s:
                self.label(s[:-1]); continue
            cur = self._parse(s)
            n = self._need(cur)
            while n > 0:
                k = min(n, 16)
                self.lines.append(f"    s_nop {k - 1}")
                self.hist.append(dict(mn="s_nop", dst=[], src=[], kind="salu", ws=k))
                n -= k
            self.lines.append("    " + s)
            self.hist.append(cur)
            if len(self.hist) > 64:
                self.hist = self.hist[-40:]

    __call__ = emit

    def text(self):
        return "\n".join(self.lines) + "\n"


def f32bits(x):
    import struct
    return struct.unpack("<I", struct.pack("<f", x))[0]


def hexf(x):
    return "0x%08x" % f32bits(x)
```

```python
from asmlib import Asm, hexf
from gen import *
import math

NG1 = 224
NCONV = 512
LDS_MID = 65536


def gen_gemm1(a):
    a("s_and_b32 s40, s2, 7")
    a("s_lshr_b32 s41, s2, 3")
    a("s_mul_i32 s42, s41, 37")
    a("s_lshr_b32 s42, s42, 8")
    a("s_mul_i32 s43, s42, 7")
    a("s_sub_u32 s43, s41, s43")
    a("s_lshr_b32 s44, s40, 1")
    a("s_lshl_b32 s44, s44, 2")
    a("s_add_u32 s44, s44, s42")
    a("s_and_b32 s45, s40, 1")
    a("s_mul_i32 s45, s45, 7")
    a("s_add_u32 s45, s45, s43")
    a("v_readfirstlane_b32 s46, v2")
    a("v_lshrrev_b32 v3, 4, v1")
    a("v_and_b32 v4, 1, v2")
    a("v_lshl_add_u32 v4, v4, 2, v3")
    a("v_and_b32 v5, 7, v1")
    a("v_xor_b32 v4, v4, v5")
    a("v_lshlrev_b32 v4, 4, v4")
    a("v_lshrrev_b32 v5, 3, v1")
    a("v_lshl_add_u32 v10, v5, 10, v4")
    a("v_lshlrev_b32 v4, 2, v3")
    a("v_and_b32 v5, 15, v1")
    a("v_xor_b32 v4, v4, v5")
    a("v_lshlrev_b32 v4, 4, v4")
    a("v_mul_u32_u24 v5, 3584, v3")
    a("v_add_u32 v11, v4, v5")
    a("s_lshl_b32 s48, s44, 17")
    a("s_lshl_b32 s50, s46, 13")
    a("s_add_u32 s48, s48, s50")
    a("s_mul_i32 s49, s46, 14336")
    a("s_lshl_b32 s50, s45, 8")
    a("s_add_u32 s49, s49, s50")
    a("s_lshl_b32 s51, s46, 10")

    def issue(ks):
        st = (ks & 1) * 32768
        for jj in range(4):
            a(f"s_add_u32 s52, s48, {jj*32768 + ks*128}")
            a(f"s_add_u32 m0, s51, {st + jj*4096}")
            a(f"buffer_load_dwordx4 v10, s[24:27], s52 offen lds")
        for jj in range(4):
            a(f"s_add_u32 s52, s49, {(ks*64 + jj*16)*3584}")
            a(f"s_add_u32 m0, s51, {st + 16384 + jj*4096}")
            a(f"buffer_load_dwordx4 v11, s[28:31], s52 offen lds")

    issue(0)
    a("v_and_b32 v4, 31, v1")
    a("v_lshrrev_b32 v5, 5, v1")
    a("v_bfe_u32 v6, v1, 1, 3")
    a("v_xor_b32 v6, v6, v5")
    a("v_lshlrev_b32 v6, 4, v6")
    a("v_and_b32 v7, 1, v2")
    a("v_lshl_add_u32 v7, v7, 6, v4")
    a("v_lshl_add_u32 v12, v7, 7, v6")
    for kk in range(1, 4):
        a(f"v_xor_b32 v{12+kk}, {32*kk}, v12")
    a("v_bfe_u32 v4, v1, 2, 2")
    a("v_lshrrev_b32 v6, 5, v1")
    a("v_lshl_add_u32 v6, v6, 3, v4")
    a("v_lshlrev_b32 v6, 8, v6")
    a("v_bfe_u32 v7, v1, 4, 1")
    a("v_lshl_add_u32 v6, v7, 5, v6")
    a("v_and_b32 v7, 3, v1")
    a("v_lshl_add_u32 v6, v7, 3, v6")
    a("v_add_u32 v6, 16384, v6")
    a("v_and_b32 v7, 2, v2")
    a("v_xor_b32 v8, v7, v4")
    a("v_lshl_add_u32 v16, v8, 6, v6")
    a("v_or_b32 v7, 1, v7")
    a("v_xor_b32 v8, v7, v4")
    a("v_lshl_add_u32 v17, v8, 6, v6")
    for r in range(64, 128):
        a(f"v_mov_b32 v{r}, 0")
    ACC = lambda ni, mi: 64 + 32 * ni + 16 * mi
    XF = lambda s, mi: 32 + 16 * s + 4 * mi
    WF = lambda s, ni: 40 + 16 * s + 4 * ni

    def reads(st, kk):
        s = kk & 1
        for mi in range(2):
            a(f"ds_read_b128 v[{XF(s,mi)}:{XF(s,mi)+3}], v{12+kk} offset:{st + 4096*mi}")
        for ni in range(2):
            for hf in range(2):
                a(f"ds_read_b64_tr_b16 v[{WF(s,ni)+2*hf}:{WF(s,ni)+2*hf+1}], v{16+ni} offset:{st + (16*kk+4*hf)*256}")

    for ks in range(8):
        st = (ks & 1) * 32768
        a("s_waitcnt vmcnt(0)")
        a("s_barrier")
        if ks + 1 < 8:
            issue(ks + 1)
        reads(st, 0)
        for kk in range(4):
            if kk < 3:
                reads(st, kk + 1)
                a("s_waitcnt lgkmcnt(6)")
            else:
                a("s_waitcnt lgkmcnt(0)")
            s = kk & 1
            for ni in range(2):
                for mi in range(2):
                    c = ACC(ni, mi)
                    a(f"v_mfma_f32_32x32x16_bf16 v[{c}:{c+15}], v[{WF(s,ni)}:{WF(s,ni)+3}], v[{XF(s,mi)}:{XF(s,mi)+3}], v[{c}:{c+15}]")
    a("v_lshrrev_b32 v5, 5, v1")
    a("v_lshrrev_b32 v6, 1, v2")
    a("v_lshlrev_b32 v6, 7, v6")
    a("v_lshl_add_u32 v6, v5, 3, v6")
    a("s_lshl_b32 s50, s45, 8")
    for ni in range(2):
        for qq in range(4):
            a(f"buffer_load_dwordx2 v[{32+8*ni+2*qq}:{33+8*ni+2*qq}], v6, s[32:35], s50 offen offset:{64*ni+16*qq}")
    a("v_and_b32 v4, 31, v1")
    a("v_and_b32 v7, 1, v2")
    a("v_lshl_add_u32 v7, v7, 6, v4")
    a("v_mul_u32_u24 v7, 3584, v7")
    a("v_lshrrev_b32 v6, 1, v2")
    a("v_lshl_add_u32 v7, v6, 7, v7")
    a("v_lshl_add_u32 v7, v5, 4, v7")
    a("s_mul_i32 s52, s44, 128*3584")
    a("s_add_u32 s52, s52, s50")
    a(f"s_add_u32 s52, s52, {hex(HH)}")
    a(f"s_add_u32 s53, s52, {32*3584}")
    c0 = -2.0 * math.sqrt(2.0 / math.pi) * math.log2(math.e)
    a(f"s_mov_b32 s54, {hexf(c0)}")
    a(f"s_mov_b32 s55, {hexf(c0 * 0.044715)}")
    a("s_waitcnt vmcnt(0)")
    BF = lambda ni, r: -1
    for ni in range(2):
        for qq in range(4):
            for j in range(2):
                src = 32 + 8 * ni + 2 * qq + j
                a(f"v_lshlrev_b32 v{128+16*ni+4*qq+2*j}, 16, v{src}")
                a(f"v_and_b32 v{129+16*ni+4*qq+2*j}, s64, v{src}")
    T0 = 32
    for ni in range(2):
        for mi in range(2):
            c = ACC(ni, mi)
            for j in range(8):
                a(f"v_cvt_pk_bf16_f32 v{T0+j}, v{c+2*j}, v{c+2*j+1}")
            for j in range(8):
                a(f"v_lshlrev_b32 v{c+2*j}, 16, v{T0+j}")
                a(f"v_and_b32 v{c+2*j+1}, s64, v{T0+j}")
            for r in range(16):
                a(f"v_add_f32 v{c+r}, v{c+r}, v{128+16*ni+r}")
            for j in range(8):
                a(f"v_cvt_pk_bf16_f32 v{T0+j}, v{c+2*j}, v{c+2*j+1}")
            for j in range(8):
                a(f"v_lshlrev_b32 v{c+2*j}, 16, v{T0+j}")
                a(f"v_and_b32 v{c+2*j+1}, s64, v{T0+j}")
            for r in range(16):
                a(f"v_mul_f32 v{T0+r}, v{c+r}, v{c+r}")
            for r in range(16):
                a(f"v_fma_f32 v{T0+r}, v{T0+r}, s55, v{18}" if False else f"v_mul_f32 v{T0+r}, s55, v{T0+r}")
            for r in range(16):
                a(f"v_add_f32 v{T0+r}, s54, v{T0+r}")
            for r in range(16):
                a(f"v_mul_f32 v{T0+r}, v{T0+r}, v{c+r}")
            for r in range(16):
                a(f"v_exp_f32 v{T0+r}, v{T0+r}")
            for r in range(16):
                a(f"v_add_f32 v{T0+r}, 1.0, v{T0+r}")
            for r in range(16):
                a(f"v_rcp_f32 v{T0+r}, v{T0+r}")
            for r in range(16):
                a(f"v_mul_f32 v{c+r}, v{c+r}, v{T0+r}")
            for j in range(8):
                a(f"v_cvt_pk_bf16_f32 v{48+j}, v{c+2*j}, v{c+2*j+1}")
            for p in range(2):
                a(f"v_permlane32_swap_b32 v{48+4*p}, v{50+4*p}")
                a(f"v_permlane32_swap_b32 v{49+4*p}, v{51+4*p}")
            for p in range(2):
                a(f"buffer_store_dwordx4 v[{48+4*p}:{51+4*p}], v7, s[24:27], s{52+mi} offen offset:{64*ni+32*p}")
    a("s_endpgm")


WND = 0
XM = 33792


def gen_conv(a):
    a(f"s_sub_u32 s3, s2, {NG1}")
    a("v_readfirstlane_b32 s46, v2")
    a("v_lshlrev_b32 v3, 1, v1")
    a("v_sub_u32 v3, 4158, v3")
    a(f"s_mul_i32 s40, s3, {KRS}")
    a(f"s_add_u32 s40, s40, {hex(KR)}")
    a("s_lshl_b32 s41, s46, 7")
    a("s_sub_u32 s40, s40, s41")
    a("s_lshl_b32 s41, s46, 10")
    for jj in range(8):
        a(f"s_sub_u32 s42, s40, {512*jj}")
        a(f"s_add_u32 m0, s41, {4096*jj}")
        a("buffer_load_dwordx4 v3, s[24:27], s42 offen lds")
    a("s_cmp_lg_u32 s46, 0")
    a("s_cbranch_scc1 C_skip33")
    a(f"s_sub_u32 s42, s40, {512*8}")
    a(f"s_mov_b32 m0, {4096*8}")
    a("s_nop 0")
    a("buffer_load_dwordx4 v3, s[24:27], s42 offen lds")
    a("C_skip33:")
    a("v_lshlrev_b32 v4, 4, v0")
    a("s_lshl_b32 s43, s3, 12")
    a(f"s_add_u32 s43, s43, {hex(XT)}")
    a("buffer_load_dwordx4 v[8:11], v4, s[24:27], s43 offen")
    a("v_mov_b32 v5, 0")
    a("s_lshl_b32 s44, s3, 1")
    a("buffer_load_ushort v20, v5, s[36:39], s44 offen")
    a("s_lshl_b32 s44, s3, 2")
    a(f"s_add_u32 s44, s44, {hex(KINV)}")
    a("buffer_load_dword v21, v5, s[24:27], s44 offen")
    a("v_lshrrev_b32 v5, 2, v0")
    a("v_mul_u32_u24 v5, 80, v5")
    a("v_and_b32 v6, 3, v0")
    a("v_lshl_add_u32 v5, v6, 4, v5")
    for r in range(12, 16):
        a(f"v_mov_b32 v{r}, 0")
    a("v_cmp_gt_u32 vcc, 160, v0")
    a("s_and_saveexec_b64 s[10:11], vcc")
    a(f"ds_write_b128 v4, v[12:15] offset:{XM}")
    a("s_mov_b64 exec, s[10:11]")
    a("v_and_b32 v6, 31, v1")
    a("v_lshrrev_b32 v7, 5, v1")
    a("v_lshlrev_b32 v16, 4, v6")
    a("v_lshlrev_b32 v17, 7, v7")
    a("v_sub_u32 v16, v16, v17")
    a("v_add_u32 v16, 256, v16")
    a("v_lshl_add_u32 v16, v2, 9, v16")
    a("v_add_u32 v17, 4, v6")
    a("v_sub_u32 v17, v17, v2")
    a("v_mul_u32_u24 v17, 80, v17")
    a("v_lshl_add_u32 v17, v7, 4, v17")
    a(f"v_add_u32 v17, {XM}, v17")
    for r in range(64, 96):
        a(f"v_mov_b32 v{r}, 0")
    a("s_waitcnt vmcnt(2)")
    a(f"ds_write_b128 v5, v[8:11] offset:{XM + 32*80}")
    a("s_waitcnt vmcnt(0) lgkmcnt(0)")
    a("s_barrier")
    FR = lambda s, i: 32 + 16 * s + 4 * i
    steps = [(mi, h) for mi in range(8) for h in range(2)]

    def reads(idx):
        mi, h = steps[idx]
        s = idx & 1
        ao = 2048 * mi + 256 * (1 - h)
        bo = (28 - 4 * mi) * 80 + 32 * h
        a(f"ds_read_b128 v[{FR(s,0)}:{FR(s,0)+3}], v16 offset:{ao}")
        a(f"ds_read_b128 v[{FR(s,2)}:{FR(s,2)+3}], v17 offset:{bo}")
        a(f"ds_read_b128 v[{FR(s,1)}:{FR(s,1)+3}], v16 offset:{ao + 32*512}")
        a(f"ds_read_b128 v[{FR(s,3)}:{FR(s,3)+3}], v17 offset:{bo + 32*80}")

    reads(0)
    for idx in range(16):
        if idx < 15:
            reads(idx + 1)
            a("s_waitcnt lgkmcnt(4)")
        else:
            a("s_waitcnt lgkmcnt(0)")
        s = idx & 1
        f = lambda i: f"v[{FR(s,i)}:{FR(s,i)+3}]"
        a(f"v_mfma_f32_32x32x16_f16 v[64:79], {f(0)}, {f(2)}, v[64:79]")
        a(f"v_mfma_f32_32x32x16_f16 v[80:95], {f(1)}, {f(2)}, v[80:95]")
        a(f"v_mfma_f32_32x32x16_f16 v[80:95], {f(0)}, {f(3)}, v[80:95]")
    a("s_barrier")
    a("v_lshlrev_b32 v4, 4, v1")
    a("v_lshl_add_u32 v4, v2, 13, v4")
    for q in range(8):
        a(f"ds_write_b128 v4, v[{64+4*q}:{67+4*q}] offset:{1024*q}")
    a("v_lshlrev_b32 v5, 4, v1")
    a("v_lshl_add_u32 v5, v2, 11, v5")
    a("v_lshrrev_b32 v8, 1, v2")
    a("v_lshl_add_u32 v8, v8, 5, v6")
    a("v_and_b32 v9, 1, v2")
    a("v_lshlrev_b32 v9, 5, v9")
    a("v_lshl_add_u32 v9, v7, 3, v9")
    a("v_mul_u32_u24 v10, 80, v8")
    a("v_add_u32 v10, v10, v9")
    a("v_lshl_add_u32 v11, v8, 6, v9")
    a("s_lshl_b32 s43, s3, 12")
    a(f"s_add_u32 s43, s43, {hex(ST)}")
    a("s_waitcnt lgkmcnt(0)")
    a("s_barrier")
    for j in range(2):
        for w in range(4):
            a(f"ds_read_b128 v[{32+16*j+4*w}:{35+16*j+4*w}], v5 offset:{8192*w + 1024*j}")
        a(f"ds_read_b64 v[{22+2*j}:{23+2*j}], v10 offset:{XM + 32*80 + 16*j}")
    a("v_lshlrev_b32 v20, 16, v20")
    a(f"v_mul_f32 v20, {hexf(1/1024)}, v20")
    a("s_waitcnt lgkmcnt(0)")
    for j in range(2):
        b = 32 + 16 * j
        for e in range(4):
            a(f"v_add_f32 v{b+e}, v{b+e}, v{b+4+e}")
            a(f"v_add_f32 v{b+8+e}, v{b+8+e}, v{b+12+e}")
        for e in range(4):
            a(f"v_add_f32 v{b+e}, v{b+e}, v{b+8+e}")
        for e in range(4):
            a(f"v_mul_f32 v{b+e}, v{b+e}, v21")
        for e2 in range(2):
            a(f"v_cvt_f32_f16 v{b+4+2*e2}, v{22+2*j+e2}")
            a(f"v_lshrrev_b32 v{b+5+2*e2}, 16, v{22+2*j+e2}")
        for e2 in range(2):
            a(f"v_cvt_f32_f16 v{b+5+2*e2}, v{b+5+2*e2}")
        for e in range(4):
            a(f"v_mul_f32 v{b+4+e}, v{b+4+e}, v20")
        for e2 in range(2):
            a(f"v_cvt_pk_bf16_f32 v{b+8+e2}, v{b+2*e2}, v{b+2*e2+1}")
            a(f"v_cvt_pk_bf16_f32 v{b+10+e2}, v{b+4+2*e2}, v{b+5+2*e2}")
        for e2 in range(2):
            a(f"v_lshlrev_b32 v{b+2*e2}, 16, v{b+8+e2}")
            a(f"v_and_b32 v{b+2*e2+1}, s64, v{b+8+e2}")
            a(f"v_lshlrev_b32 v{b+4+2*e2}, 16, v{b+10+e2}")
            a(f"v_and_b32 v{b+5+2*e2}, s64, v{b+10+e2}")
        for e in range(4):
            a(f"v_add_f32 v{b+e}, v{b+e}, v{b+4+e}")
        for e2 in range(2):
            a(f"v_cvt_pk_bf16_f32 v{b+8+e2}, v{b+2*e2}, v{b+2*e2+1}")
        a(f"buffer_store_dwordx2 v[{b+8}:{b+9}], v11, s[24:27], s43 offen offset:{16*j}")
    a("s_endpgm")


def gen_mid():
    a = Asm()
    kernel_head(a, "mid_kernel")
    a(f"s_cmp_ge_u32 s2, {NG1 + NCONV}")
    a("s_cbranch_scc1 M_done")
    a("s_load_dwordx2 s[4:5], s[0:1], 112")
    a("s_load_dwordx4 s[8:11], s[0:1], 64")
    a("s_load_dwordx2 s[6:7], s[0:1], 48")
    a("v_and_b32 v1, 63, v0")
    a("v_lshrrev_b32 v2, 6, v0")
    a("s_mov_b32 s64, 0xffff0000")
    a("s_waitcnt lgkmcnt(0)")
    srd(a, 24, 4, WS_USED)
    srd(a, 28, 8, 512 * 1792 * 2)
    srd(a, 32, 10, 1792 * 2)
    srd(a, 36, 6, 512 * 2)
    a(f"s_cmp_ge_u32 s2, {NG1}")
    a("s_cbranch_scc1 M_conv")
    gen_gemm1(a)
    a("M_conv:")
    a.hist = []
    gen_conv(a)
    a("M_done:")
    a("s_endpgm")
    return a, f"; @launch kernel=mid_kernel grid=({NG1+NCONV},1,1) block=(256,1,1) lds={LDS_MID}"
```

```python
from asmlib import Asm, hexf
from gen import *
import math

NG2 = 256
NST = 4
LDS_FIN = NST * 32768
NKS = 14


def gen_fin():
    a = Asm()
    kernel_head(a, "fin_kernel")
    a(f"s_cmp_ge_u32 s2, {NG2}")
    a("s_cbranch_scc1 F_done")
    a("s_load_dwordx2 s[4:5], s[0:1], 112")
    a("s_load_dwordx4 s[8:11], s[0:1], 80")
    a("s_load_dwordx2 s[6:7], s[0:1], 0")
    a("s_load_dwordx2 s[12:13], s[0:1], 96")
    a("v_and_b32 v1, 63, v0")
    a("v_lshrrev_b32 v2, 6, v0")
    a("s_mov_b32 s64, 0xffff0000")
    a("v_readfirstlane_b32 s46, v2")
    a("s_and_b32 s40, s2, 7")
    a("s_lshr_b32 s41, s2, 3")
    a("s_lshr_b32 s44, s41, 3")
    a("s_lshl_b32 s40, s40, 2")
    a("s_add_u32 s44, s44, s40")
    a("s_and_b32 s45, s41, 7")
    a("v_lshrrev_b32 v3, 4, v1")
    a("v_lshl_add_u32 v4, v2, 2, v3")
    a("v_and_b32 v5, 15, v1")
    a("v_xor_b32 v4, v4, v5")
    a("v_lshlrev_b32 v4, 4, v4")
    a("v_mul_u32_u24 v5, 3584, v3")
    a("v_add_u32 v10, v4, v5")
    a("v_and_b32 v4, 1, v3")
    a("v_lshlrev_b32 v4, 2, v4")
    a("v_and_b32 v5, 7, v1")
    a("v_xor_b32 v4, v4, v5")
    a("v_lshlrev_b32 v4, 4, v4")
    a("v_lshrrev_b32 v5, 3, v1")
    a("v_lshl_add_u32 v11, v5, 10, v4")
    a("s_lshl_b32 s48, s44, 6")
    a("s_lshl_b32 s50, s46, 2")
    a("s_add_u32 s48, s48, s50")
    a("s_mul_i32 s48, s48, 3584")
    a(f"s_add_u32 s48, s48, {hex(HH)}")
    a("s_lshl_b32 s49, s46, 13")
    a("s_lshl_b32 s50, s45, 7")
    a("s_add_u32 s49, s49, s50")
    a("s_lshl_b32 s51, s46, 10")
    a("s_waitcnt lgkmcnt(0)")
    srd(a, 24, 4, WS_USED)
    srd(a, 28, 8, 1792 * 512 * 2)
    srd(a, 32, 10, 512 * 2)
    srd(a, 36, 6, 2048 * 512 * 2)
    srd(a, 56, 12, 2048 * 512 * 2)

    def issue(ks):
        st = (ks % NST) * 32768
        for jj in range(4):
            a(f"s_add_u32 s52, s48, {jj*16*3584 + ks*256}")
            a(f"s_add_u32 m0, s51, {st + jj*4096}")
            a(f"buffer_load_dwordx4 v10, s[24:27], s52 offen lds")
        for jj in range(4):
            a(f"s_add_u32 s52, s49, {(ks*128 + jj*32)*1024}")
            a(f"s_add_u32 m0, s51, {st + 16384 + jj*4096}")
            a(f"buffer_load_dwordx4 v11, s[28:31], s52 offen lds")

    a("v_and_b32 v4, 15, v0")
    a("v_lshrrev_b32 v5, 4, v0")
    a("v_lshlrev_b32 v6, 3, v4")
    a("v_lshl_add_u32 v18, v5, 12, v6")
    a("s_lshl_b32 s53, s44, 16")
    a("s_lshl_b32 s50, s45, 7")
    a("s_add_u32 s53, s53, s50")
    a("v_lshlrev_b32 v7, 3, v5")
    a("v_lshl_add_u32 v19, v4, 14, v7")
    a("s_lshl_b32 s54, s45, 18")
    a("s_lshl_b32 s55, s44, 7")
    a("s_add_u32 s54, s54, s55")
    a(f"s_add_u32 s54, s54, {hex(ST)}")
    a("s_add_u32 s55, s54, 8192")
    for jj in range(4):
        a(f"buffer_load_dwordx2 v[{128+2*jj}:{129+2*jj}], v18, s[36:39], s53 offen offset:{1024*jj}")
    a("buffer_load_dwordx2 v[136:137], v19, s[24:27], s54 offen")
    a("v_add_u32 v7, 4096, v19")
    a("buffer_load_dwordx2 v[138:139], v7, s[24:27], s54 offen")
    a("buffer_load_dwordx2 v[140:141], v19, s[24:27], s55 offen")
    a("buffer_load_dwordx2 v[142:143], v7, s[24:27], s55 offen")
    a("buffer_load_dwordx2 v[144:145], v6, s[32:35], s50 offen")
    for ks in range(NST - 1):
        issue(ks)
    a("v_and_b32 v4, 31, v1")
    a("v_lshrrev_b32 v5, 5, v1")
    a("v_lshl_add_u32 v6, v2, 2, v5")
    a("v_and_b32 v7, 15, v1")
    a("v_xor_b32 v8, v6, v7")
    a("v_lshlrev_b32 v8, 4, v8")
    a("v_lshl_add_u32 v12, v4, 8, v8")
    a("v_xor_b32 v13, 32, v12")
    a("v_bfe_u32 v4, v1, 2, 2")
    a("v_lshl_add_u32 v6, v5, 3, v4")
    a("v_lshl_add_u32 v6, v2, 5, v6")
    a("v_lshlrev_b32 v6, 7, v6")
    a("v_bfe_u32 v7, v1, 4, 1")
    a("v_lshl_add_u32 v6, v7, 5, v6")
    a("v_and_b32 v7, 3, v1")
    a("v_lshl_add_u32 v6, v7, 3, v6")
    a("v_add_u32 v6, 16384, v6")
    a("v_lshrrev_b32 v7, 1, v4")
    a("v_lshl_add_u32 v16, v7, 6, v6")
    a("v_xor_b32 v17, 64, v16")
    for i, r in enumerate((12, 13, 16, 17)):
        a(f"v_add_u32 v{20+i}, 0x10000, v{r}")
    for r in range(64, 128):
        a(f"v_mov_b32 v{r}, 0")
    ACC = lambda di, mi: 64 + 32 * di + 16 * mi
    XF = lambda s, mi: 32 + 16 * s + 4 * mi
    WF = lambda s, di: 40 + 16 * s + 4 * di

    def reads(st, u):
        hi = st >= 65536
        so = st & 65535
        xa = (20 + u) if hi else (12 + u)
        for mi in range(2):
            a(f"ds_read_b128 v[{XF(u,mi)}:{XF(u,mi)+3}], v{xa} offset:{so + 8192*mi}")
        for di in range(2):
            wa = (22 + di) if hi else (16 + di)
            for hf in range(2):
                a(f"ds_read_b64_tr_b16 v[{WF(u,di)+2*hf}:{WF(u,di)+2*hf+1}], v{wa} offset:{so + (16*u+4*hf)*128}")

    for ks in range(NKS):
        st = (ks % NST) * 32768
        left = min(NKS - 1 - ks, NST - 2)
        a(f"s_waitcnt vmcnt({8*left})")
        a("s_barrier")
        if ks + NST - 1 < NKS:
            issue(ks + NST - 1)
        reads(st, 0)
        reads(st, 1)
        for u in range(2):
            a(f"s_waitcnt lgkmcnt({6*(1-u)})")
            for di in range(2):
                for mi in range(2):
                    c = ACC(di, mi)
                    a(f"v_mfma_f32_32x32x16_bf16 v[{c}:{c+15}], v[{WF(u,di)}:{WF(u,di)+3}], v[{XF(u,mi)}:{XF(u,mi)+3}], v[{c}:{c+15}]")
    PW = 16 * 1056
    a("v_and_b32 v4, 31, v1")
    a("v_lshrrev_b32 v5, 5, v1")
    a("v_mul_u32_u24 v5, 528, v5")
    a("v_lshl_add_u32 v4, v4, 4, v5")
    a(f"v_mul_u32_u24 v5, {PW}, v2")
    a("v_add_u32 v4, v4, v5")
    a("v_bfe_u32 v5, v0, 3, 1")
    a("v_lshrrev_b32 v6, 7, v0")
    a("v_lshl_add_u32 v5, v5, 1, v6")
    a("v_bfe_u32 v6, v0, 1, 2")
    a("v_lshl_add_u32 v5, v5, 2, v6")
    a("v_mul_u32_u24 v5, 1056, v5")
    a("v_and_b32 v6, 1, v0")
    a("v_mul_u32_u24 v6, 528, v6")
    a("v_add_u32 v5, v5, v6")
    a("v_bfe_u32 v6, v0, 4, 3")
    a("v_lshl_add_u32 v5, v6, 6, v5")
    a("s_barrier")
    for q in range(16):
        a(f"ds_write_b128 v4, v[{64+4*q}:{67+4*q}] offset:{1056*q}")
    a("s_waitcnt lgkmcnt(0)")
    a("s_barrier")
    for w in range(4):
        for jj in range(4):
            a(f"ds_read_b128 v[{64+16*w+4*jj}:{67+16*w+4*jj}], v5 offset:{PW*w + 16*jj}")
    a("s_waitcnt vmcnt(0)")
    X = lambda jj, dd: 32 + 4 * jj + dd
    S = lambda jj, dd: 48 + 4 * jj + dd
    for jj in range(4):
        for p in range(2):
            a(f"v_lshlrev_b32 v{X(jj,2*p)}, 16, v{128+2*jj+p}")
            a(f"v_and_b32 v{X(jj,2*p+1)}, s64, v{128+2*jj+p}")
    for dd in range(4):
        for p in range(2):
            a(f"v_lshlrev_b32 v{S(2*p,dd)}, 16, v{136+2*dd+p}")
            a(f"v_and_b32 v{S(2*p+1,dd)}, s64, v{136+2*dd+p}")
    for p in range(2):
        a(f"v_lshlrev_b32 v{24+2*p}, 16, v{144+p}")
        a(f"v_and_b32 v{25+2*p}, s64, v{144+p}")
    a("s_waitcnt lgkmcnt(0)")
    for r in range(16):
        a(f"v_add_f32 v{64+r}, v{64+r}, v{80+r}")
        a(f"v_add_f32 v{96+r}, v{96+r}, v{112+r}")
    for r in range(16):
        a(f"v_add_f32 v{64+r}, v{64+r}, v{96+r}")
    O, T = 64, 80

    def rnd(base):
        for j in range(8):
            a(f"v_cvt_pk_bf16_f32 v{T+j}, v{base+2*j}, v{base+2*j+1}")
        for j in range(8):
            a(f"v_lshlrev_b32 v{base+2*j}, 16, v{T+j}")
            a(f"v_and_b32 v{base+2*j+1}, s64, v{T+j}")

    rnd(O)
    for r in range(16):
        a(f"v_add_f32 v{O+r}, v{O+r}, v{24+(r&3)}")
    rnd(O)
    for r in range(16):
        a(f"v_mul_f32 v{96+r}, 0xbfb8aa3b, v{O+r}")
    for r in range(16):
        a(f"v_exp_f32 v{96+r}, v{96+r}")
    for r in range(16):
        a(f"v_add_f32 v{96+r}, 1.0, v{96+r}")
    for r in range(16):
        a(f"v_rcp_f32 v{96+r}, v{96+r}")
    for r in range(16):
        a(f"v_mul_f32 v{O+r}, v{O+r}, v{96+r}")
    rnd(O)
    for r in range(16):
        a(f"v_mul_f32 v{O+r}, v{O+r}, v{48+r}")
    rnd(O)
    for r in range(16):
        a(f"v_add_f32 v{O+r}, v{O+r}, v{32+r}")
    for j in range(8):
        a(f"v_cvt_pk_bf16_f32 v{T+j}, v{O+2*j}, v{O+2*j+1}")
    for jj in range(4):
        a(f"buffer_store_dwordx2 v[{T+2*jj}:{T+2*jj+1}], v18, s[56:59], s53 offen offset:{1024*jj}")
    a("F_done:")
    a("s_endpgm")
    return a, f"; @launch kernel=fin_kernel grid=({NG2},1,1) block=(256,1,1) lds={LDS_FIN}"
```

```python
import sys, os
sys.path.insert(0, os.path.dirname(os.path.abspath(__file__)))
from asmlib import Asm, hexf, f32bits
import math

XN = 0x000000
XT = 0x200000
KR = 0x400000
KRS = 4160
KINV = 0x680000
ST = 0x700000
HH = 0x900000
WS_USED = 0x1000000

NLN = 128

DPP = "row_mask:0xf bank_mask:0xf"


def srd(a, d, base, nbytes):
    a(f"s_mov_b32 s{d}, s{base}")
    a(f"s_mov_b32 s{d+1}, s{base+1}")
    a(f"s_mov_b32 s{d+2}, {hex(nbytes)}")
    a(f"s_mov_b32 s{d+3}, 0x00020000")


def reduce_sum(a, regs, tmps):
    for mod in ("quad_perm:[1,0,3,2]", "quad_perm:[2,3,0,1]", "row_half_mirror", "row_mirror"):
        for r in regs:
            a(f"v_add_f32_dpp v{r}, v{r}, v{r} {mod} {DPP}")
    for sw in ("v_permlane16_swap_b32", "v_permlane32_swap_b32"):
        for r, t in zip(regs, tmps):
            a(f"v_mov_b32 v{t}, v{r}")
        for r, t in zip(regs, tmps):
            a(f"{sw} v{r}, v{t}")
        for r, t in zip(regs, tmps):
            a(f"v_add_f32 v{r}, v{r}, v{t}")


def kernel_head(a, name):
    a.raw(f".globl {name}")
    a.raw(".p2align 8")
    a.raw(f".type {name},@function")
    a.raw(f"{name}:")
    a.hist = []


def kernel_desc(name, nv, ns=102):
    nv = (nv + 7) // 8 * 8
    return f""".p2align 6
.amdhsa_kernel {name}
  .amdhsa_next_free_vgpr {nv}
  .amdhsa_next_free_sgpr {ns}
  .amdhsa_accum_offset {nv}
  .amdhsa_group_segment_fixed_size 0
  .amdhsa_kernarg_size 120
  .amdhsa_user_sgpr_count 2
  .amdhsa_user_sgpr_kernarg_segment_ptr 1
  .amdhsa_system_sgpr_workgroup_id_x 1
.end_amdhsa_kernel
"""


def gen_prep():
    a = Asm()
    kernel_head(a, "prep_kernel")
    a(f"s_cmp_ge_u32 s2, {NLN + 512}")
    a("s_cbranch_scc1 P_done")
    a("s_load_dwordx2 s[4:5], s[0:1], 0")
    a("s_load_dwordx4 s[12:15], s[0:1], 8")
    a("s_load_dwordx4 s[16:19], s[0:1], 24")
    a("s_load_dwordx2 s[20:21], s[0:1], 40")
    a("s_load_dwordx2 s[6:7], s[0:1], 112")
    a("v_and_b32 v1, 63, v0")
    a("v_lshrrev_b32 v2, 6, v0")
    a("s_mov_b32 s64, 0xffff0000")
    a("s_waitcnt lgkmcnt(0)")
    srd(a, 24, 6, WS_USED)
    a(f"s_cmp_ge_u32 s2, {NLN}")
    a("s_cbranch_scc1 P_kgen")
    srd(a, 28, 4, 2048 * 512 * 2)
    a("v_lshlrev_b32 v3, 4, v1")
    a("v_lshl_add_u32 v3, v2, 12, v3")
    a("s_lshl_b32 s3, s2, 14")
    P = lambda r: 8 + 4 * r
    F = lambda r, e: 24 + 8 * r + e
    S = [56 + r for r in range(4)]
    T = [60 + r for r in range(4)]
    Q = [64 + r for r in range(4)]
    for r in range(4):
        a(f"buffer_load_dwordx4 v[{P(r)}:{P(r)+3}], v3, s[28:31], s3 offen offset:{1024*r}")
    a("v_lshlrev_b32 v4, 2, v2")
    a("v_mul_u32_u24 v4, 1088, v4")
    a("v_lshl_add_u32 v4, v1, 4, v4")
    a("v_bfe_u32 v5, v1, 2, 2")
    a("v_mul_u32_u24 v5, 1088, v5")
    a("v_lshrrev_b32 v6, 4, v1")
    a("v_lshl_add_u32 v5, v6, 5, v5")
    a("v_and_b32 v6, 3, v1")
    a("v_lshl_add_u32 v5, v6, 3, v5")
    a("v_lshl_add_u32 v5, v2, 8, v5")
    a("v_lshlrev_b32 v7, 12, v1")
    a("v_lshl_add_u32 v7, v2, 19, v7")
    a("s_lshl_b32 s8, s2, 5")
    a(f"s_add_u32 s8, s8, {hex(XT)}")
    a("s_add_u32 s9, s8, 0x40000")
    for r in range(4):
        a(f"s_waitcnt vmcnt({3-r})")
        for j in range(4):
            a(f"v_lshlrev_b32 v{F(r,2*j)}, 16, v{P(r)+j}")
            a(f"v_and_b32 v{F(r,2*j+1)}, s64, v{P(r)+j}")
    for r in range(4):
        a(f"v_add_f32 v{S[r]}, v{F(r,0)}, v{F(r,1)}")
        a(f"v_add_f32 v{T[r]}, v{F(r,2)}, v{F(r,3)}")
        a(f"v_add_f32 v{Q[r]}, v{F(r,4)}, v{F(r,5)}")
        a(f"v_add_f32 v{S[r]}, v{S[r]}, v{T[r]}")
        a(f"v_add_f32 v{T[r]}, v{F(r,6)}, v{F(r,7)}")
        a(f"v_add_f32 v{Q[r]}, v{Q[r]}, v{T[r]}")
        a(f"v_add_f32 v{S[r]}, v{S[r]}, v{Q[r]}")
    reduce_sum(a, S, T)
    for r in range(4):
        a(f"v_mul_f32 v{S[r]}, {hexf(1/512)}, v{S[r]}")
    for r in range(4):
        for e in range(8):
            a(f"v_sub_f32 v{T[r]}, v{F(r,e)}, v{S[r]}")
            if e == 0:
                a(f"v_mul_f32 v{Q[r]}, v{T[r]}, v{T[r]}")
            else:
                a(f"v_fmac_f32 v{Q[r]}, v{T[r]}, v{T[r]}")
    reduce_sum(a, Q, T)
    for r in range(4):
        a(f"v_mul_f32 v{Q[r]}, {hexf(1/512)}, v{Q[r]}")
    for r in range(4):
        a(f"v_cvt_pk_bf16_f32 v{T[r]}, v{S[r]}, v{Q[r]}")
    for r in range(4):
        a(f"v_lshlrev_b32 v{S[r]}, 16, v{T[r]}")
        a(f"v_and_b32 v{Q[r]}, s64, v{T[r]}")
    for r in range(4):
        a(f"v_add_f32 v{Q[r]}, {hexf(1e-5)}, v{Q[r]}")
    for r in range(4):
        a(f"v_cvt_pk_bf16_f32 v{Q[r]}, v{Q[r]}, v{Q[r]}")
    for r in range(4):
        a(f"v_and_b32 v{Q[r]}, s64, v{Q[r]}")
    for r in range(4):
        a(f"v_sqrt_f32 v{Q[r]}, v{Q[r]}")
    for r in range(4):
        a(f"v_cvt_pk_bf16_f32 v{Q[r]}, v{Q[r]}, v{Q[r]}")
    for r in range(4):
        a(f"v_and_b32 v{Q[r]}, s64, v{Q[r]}")
    for r in range(4):
        a(f"v_rcp_f32 v{Q[r]}, v{Q[r]}")
    H16 = lambda r: 72 + 4 * r
    for r in range(4):
        for e in range(8):
            a(f"v_sub_f32 v{F(r,e)}, v{F(r,e)}, v{S[r]}")
        for j in range(4):
            a(f"v_cvt_pk_bf16_f32 v{P(r)+j}, v{F(r,2*j)}, v{F(r,2*j+1)}")
        for j in range(4):
            a(f"v_lshlrev_b32 v{F(r,2*j)}, 16, v{P(r)+j}")
            a(f"v_and_b32 v{F(r,2*j+1)}, s64, v{P(r)+j}")
        for e in range(8):
            a(f"v_mul_f32 v{F(r,e)}, v{F(r,e)}, v{Q[r]}")
        for j in range(4):
            a(f"v_cvt_pk_bf16_f32 v{P(r)+j}, v{F(r,2*j)}, v{F(r,2*j+1)}")
        a(f"buffer_store_dwordx4 v[{P(r)}:{P(r)+3}], v3, s[24:27], s3 offen offset:{1024*r}")
        for j in range(4):
            a(f"v_lshlrev_b32 v{F(r,2*j)}, 16, v{P(r)+j}")
            a(f"v_and_b32 v{F(r,2*j+1)}, s64, v{P(r)+j}")
        for e in range(8):
            a(f"v_mul_f32 v{F(r,e)}, 0x44800000, v{F(r,e)}")
        for j in range(4):
            a(f"v_cvt_pk_f16_f32 v{H16(r)+j}, v{F(r,2*j)}, v{F(r,2*j+1)}")
        a(f"ds_write_b128 v4, v[{H16(r)}:{H16(r)+3}] offset:{1088*r}")
    a("s_waitcnt lgkmcnt(0)")
    a("s_barrier")
    for q in range(2):
        for j in range(4):
            a(f"ds_read_b64_tr_b16 v[{24+8*q+2*j}:{25+8*q+2*j}], v5 offset:{4*j*1088 + 128*q}")
    for q in range(2):
        a(f"s_waitcnt lgkmcnt({4*(1-q)})")
        a(f"buffer_store_dwordx4 v[{24+8*q}:{27+8*q}], v7, s[24:27], s{8+q} offen")
        a(f"buffer_store_dwordx4 v[{28+8*q}:{31+8*q}], v7, s[24:27], s{8+q} offen offset:16")
    a("s_endpgm")
    a("P_kgen:")
    a.hist = []
    srd(a, 32, 12, 512 * 128 * 2)
    srd(a, 36, 14, 512 * 128 * 2)
    srd(a, 40, 16, 512 * 128 * 2)
    srd(a, 44, 18, 512 * 128 * 2)
    srd(a, 48, 20, 512 * 2)
    a(f"s_sub_u32 s3, s2, {NLN}")
    a("s_lshl_b32 s8, s3, 8")
    a("s_lshl_b32 s9, s3, 1")
    a("v_lshrrev_b32 v3, 4, v1")
    a("v_and_b32 v4, 15, v1")
    a("v_lshlrev_b32 v31, 3, v3")
    a("v_lshl_add_u32 v31, v2, 6, v31")
    RAW = {"lar": 12, "aim": 16, "cr": 20, "ci": 24}
    SRDS = {"lar": 32, "aim": 36, "cr": 40, "ci": 44}
    a("v_mov_b32 v30, 0")
    a("buffer_load_ushort v30, v30, s[48:51], s9 offen")
    a("v_lshlrev_b32 v29, 2, v1")
    a("buffer_load_dword v28, v29, s[40:43], s8 offen")
    a("buffer_load_dword v29, v29, s[44:47], s8 offen")
    for nm in RAW:
        for ks in range(2):
            a(f"buffer_load_dwordx2 v[{RAW[nm]+2*ks}:{RAW[nm]+2*ks+1}], v31, s[{SRDS[nm]}:{SRDS[nm]+3}], s8 offen offset:{32*ks}")
    a("s_mov_b32 s60, 0x3fb8aa3b")
    a("s_mov_b32 s61, 0x32a57060")
    a(f"s_mov_b32 s62, {hexf(math.log(2))}")
    a("v_lshlrev_b32 v5, 4, v4")
    a("v_lshlrev_b32 v7, 1, v4")
    a("v_add_u32 v7, 256, v7")
    a("v_bfe_u32 v92, v4, 2, 1")
    a("v_lshlrev_b32 v92, 8, v92")
    a("v_and_b32 v93, 3, v4")
    a("v_lshl_add_u32 v92, v93, 2, v92")
    a("v_add_u32 v92, 512, v92")
    a("v_cmp_gt_u32 vcc, 8, v4")
    a("v_cndmask_b32 v7, v92, v7, vcc")
    a("v_lshrrev_b32 v92, 1, v4")
    a("v_lshlrev_b32 v92, 8, v92")
    a("v_and_b32 v93, 1, v4")
    a("v_lshl_add_u32 v92, v93, 3, v92")
    a("v_add_u32 v8, 1024, v92")
    a("v_mov_b32 v93, 2304")
    a("v_cmp_gt_u32 vcc, 9, v4")
    a("v_cndmask_b32 v8, v93, v8, vcc")
    a("v_mov_b32 v6, v4")
    a("v_mul_u32_u24 v92, 10240, v2")
    a("v_lshl_add_u32 v92, v3, 8, v92")
    for t in range(3):
        a(f"v_lshl_add_u32 v{9+t}, v{6+t}, 2, v92")
    for r in (5, 6, 7, 8):
        a(f"v_cvt_f32_u32 v{r}, v{r}")
    for r in range(64, 76):
        a(f"v_mov_b32 v{r}, 0")

    def exp_comp(dsts, xs, t0):
        n = len(xs)
        t = [t0 + i for i in range(n)]
        r = [t0 + n + i for i in range(n)]
        for i in range(n):
            a(f"v_mul_f32 v{t[i]}, s60, v{xs[i]}")
        for i in range(n):
            a(f"v_fma_f32 v{r[i]}, v{xs[i]}, s60, -v{t[i]}")
        for i in range(n):
            a(f"v_fma_f32 v{r[i]}, v{xs[i]}, s61, v{r[i]}")
        for i in range(n):
            a(f"v_exp_f32 v{t[i]}, v{t[i]}")
        for i in range(n):
            a(f"v_mul_f32 v{r[i]}, s62, v{r[i]}")
        for i in range(n):
            a(f"v_fma_f32 v{dsts[i]}, v{t[i]}, v{r[i]}, v{t[i]}")

    a("s_waitcnt vmcnt(10)")
    a("v_lshlrev_b32 v30, 16, v30")
    exp_comp([30], [30], 92)
    a("v_cvt_pk_bf16_f32 v30, v30, v30")
    a("v_and_b32 v30, s64, v30")
    a("s_waitcnt vmcnt(8)")
    a("v_lshlrev_b32 v92, 16, v28")
    a("v_and_b32 v93, s64, v28")
    a("v_lshlrev_b32 v94, 16, v29")
    a("v_and_b32 v95, s64, v29")
    a("v_add_f32 v92, |v92|, |v93|")
    a("v_add_f32 v94, |v94|, |v95|")
    a("v_add_f32 v28, v92, v94")
    reduce_sum(a, [28], [29])
    a("v_mul_f32 v28, v28, v30")
    a("v_add_f32 v28, v28, v28")
    a("v_lshrrev_b32 v28, 23, v28")
    a("v_sub_u32 v28, 268, v28")
    a("v_min_u32 v28, 240, v28")
    a("v_sub_u32 v29, 244, v28")
    a("v_lshlrev_b32 v29, 23, v29")
    a("v_lshlrev_b32 v28, 23, v28")
    a("v_mul_f32 v28, v28, v30")
    a("v_add_f32 v28, v28, v28")
    AL, OM, CR, CI = 32, 40, 48, 56
    a("s_waitcnt vmcnt(0)")
    for nm, dst in (("lar", AL), ("aim", OM), ("cr", CR), ("ci", CI)):
        for j in range(4):
            a(f"v_lshlrev_b32 v{dst+2*j}, 16, v{RAW[nm]+j}")
            a(f"v_and_b32 v{dst+2*j+1}, s64, v{RAW[nm]+j}")
    exp_comp([AL + i for i in range(8)], [AL + i for i in range(8)], 92)
    for j in range(4):
        a(f"v_cvt_pk_bf16_f32 v{92+j}, v{AL+2*j}, v{AL+2*j+1}")
    for j in range(4):
        a(f"v_lshlrev_b32 v{AL+2*j}, 16, v{92+j}")
        a(f"v_and_b32 v{AL+2*j+1}, s64, v{92+j}")
    for i in range(8):
        a(f"v_mul_f32 v{AL+i}, v{AL+i}, v30")
        a(f"v_mul_f32 v{OM+i}, v{OM+i}, v30")
        a(f"v_mul_f32 v{CR+i}, v{CR+i}, v28")
        a(f"v_mul_f32 v{CI+i}, v{CI+i}, v28")
    for i in range(8):
        a(f"v_mul_f32 v{AL+i}, 0xbfb8aa3b, v{AL+i}")
        a(f"v_mul_f32 v{OM+i}, 0.15915494, v{OM+i}")
    AH, ALO, BH, BL = 76, 80, 84, 88
    EA, TH, CC, SS, U0, U1 = 92, 96, 100, 104, 108, 112

    def cexp(ks, pf):
        for u in range(4):
            a(f"v_mul_f32 v{EA+u}, v{AL+4*ks+u}, v{pf}")
            a(f"v_mul_f32 v{TH+u}, v{OM+4*ks+u}, v{pf}")
        for u in range(4):
            a(f"v_fract_f32 v{TH+u}, v{TH+u}")
        for u in range(4):
            a(f"v_exp_f32 v{EA+u}, v{EA+u}")
            a(f"v_cos_f32 v{CC+u}, v{TH+u}")
            a(f"v_sin_f32 v{SS+u}, v{TH+u}")
        for u in range(4):
            a(f"v_mul_f32 v{CC+u}, v{EA+u}, v{CC+u}")
            a(f"v_mul_f32 v{SS+u}, v{EA+u}, v{SS+u}")

    def split(re, im, hi, lo):
        for u in range(4):
            a(f"v_cvt_pk_bf16_f32 v{hi+u}, v{re+u}, v{im+u}")
        for u in range(4):
            a(f"v_lshlrev_b32 v{EA+u}, 16, v{hi+u}")
            a(f"v_and_b32 v{TH+u}, s64, v{hi+u}")
        for u in range(4):
            a(f"v_sub_f32 v{EA+u}, v{re+u}, v{EA+u}")
            a(f"v_sub_f32 v{TH+u}, v{im+u}, v{TH+u}")
        for u in range(4):
            a(f"v_cvt_pk_bf16_f32 v{lo+u}, v{EA+u}, v{TH+u}")

    for ks in range(2):
        cexp(ks, 5)
        for u in range(4):
            m = 4 * ks + u
            a(f"v_mul_f32 v{U0+u}, v{CR+m}, v{CC+u}")
            a(f"v_mul_f32 v{U1+u}, v{CR+m}, v{SS+u}")
        for u in range(4):
            m = 4 * ks + u
            a(f"v_fma_f32 v{U0+u}, -v{CI+m}, v{SS+u}, v{U0+u}")
            a(f"v_fma_f32 v{U1+u}, -v{CI+m}, v{CC+u}, -v{U1+u}")
        split(U0, U1, AH, ALO)
        for t in range(3):
            cexp(ks, 6 + t)
            split(CC, SS, BH, BL)
            acc = f"v[{64+4*t}:{67+4*t}]"
            a(f"v_mfma_f32_16x16x32_bf16 {acc}, v[{AH}:{AH+3}], v[{BH}:{BH+3}], {acc}")
            a(f"v_mfma_f32_16x16x32_bf16 {acc}, v[{AH}:{AH+3}], v[{BL}:{BL+3}], {acc}")
            a(f"v_mfma_f32_16x16x32_bf16 {acc}, v[{ALO}:{ALO+3}], v[{BH}:{BH+3}], {acc}")
    a("v_lshlrev_b32 v92, 3, v0")
    a("v_sub_u32 v92, 2047, v92")
    for e in range(8):
        a(f"v_subrev_u32 v{96+e}, {e}, v92")
    for e in range(8):
        a(f"v_cvt_f32_u32 v{96+e}, v{96+e}")
    for j in range(4):
        a(f"v_cvt_pk_bf16_f32 v{104+j}, v{96+2*j}, v{97+2*j}")
    for j in range(4):
        a(f"v_lshlrev_b32 v{96+2*j}, 16, v{104+j}")
        a(f"v_and_b32 v{97+2*j}, s64, v{104+j}")
    for e in range(8):
        a(f"v_cvt_u32_f32 v{96+e}, v{96+e}")
    for e in range(8):
        a(f"v_lshlrev_b32 v{96+e}, 2, v{96+e}")
    for t in range(3):
        for r in range(4):
            a(f"ds_write_b32 v{9+t}, v{64+4*t+r} offset:{64*r}")
    a("s_waitcnt lgkmcnt(0)")
    a("s_barrier")
    for w in range(4):
        for e in range(8):
            a(f"ds_read_b32 v{32+8*w+e}, v{96+e} offset:{10240*w}")
    a(f"s_mul_i32 s8, s3, {KRS}")
    a(f"s_add_u32 s8, s8, {hex(KR)}")
    a("v_lshlrev_b32 v92, 4, v0")
    a("s_waitcnt lgkmcnt(0)")
    for e in range(8):
        a(f"v_add_f32 v{32+e}, v{32+e}, v{40+e}")
        a(f"v_add_f32 v{48+e}, v{48+e}, v{56+e}")
    for e in range(8):
        a(f"v_add_f32 v{32+e}, v{32+e}, v{48+e}")
    for j in range(4):
        a(f"v_cvt_pk_f16_f32 v{40+j}, v{32+2*j}, v{33+2*j}")
    a("buffer_store_dwordx4 v[40:43], v92, s[24:27], s8 offen")
    for r in range(44, 48):
        a(f"v_mov_b32 v{r}, 0")
    a("v_add_u32 v92, 4096, v92")
    a("s_lshl_b32 s9, s3, 2")
    a(f"s_add_u32 s9, s9, {hex(KINV)}")
    a("v_cmp_gt_u32 vcc, 4, v0")
    a("s_and_saveexec_b64 s[10:11], vcc")
    a("s_cbranch_execz P_done")
    a("buffer_store_dwordx4 v[44:47], v92, s[24:27], s8 offen")
    a("buffer_store_dword v29, v44, s[24:27], s9 offen")
    a("P_done:")
    a("s_endpgm")
    return a


HEADER = """; S4D conv + GELU MLP block, gfx950.  Generated by dev/gen.py
"""


def main():
    out = sys.argv[1] if len(sys.argv) > 1 else "k.s"
    upto = int(sys.argv[2]) if len(sys.argv) > 2 else 3
    ks = []
    launches = []
    a = gen_prep()
    ks.append(("prep_kernel", a))
    launches.append(f"; @launch kernel=prep_kernel grid=({NLN+512},1,1) block=(256,1,1) lds=40960")
    if upto >= 2:
        import gen2
        a, l = gen2.gen_mid()
        ks.append(("mid_kernel", a)); launches.append(l)
    if upto >= 3:
        import gen3
        a, l = gen3.gen_fin()
        ks.append(("fin_kernel", a)); launches.append(l)
    txt = HEADER + "\n".join(launches) + "\n"
    txt += '.amdgcn_target "amdgcn-amd-amdhsa--gfx950"\n.text\n'
    for n, a in ks:
        txt += a.text()
    txt += '.section .rodata,"a"\n'
    for n, a in ks:
        txt += kernel_desc(n, a.maxv + 1)
        print(n, "vgprs", a.maxv + 1, "sgprs", a.maxs + 1, "lines", len(a.lines))
    open(out, "w").write(txt)


if __name__ == "__main__":
    main()
```

```python
import re

TRANS = {"v_exp_f32", "v_log_f32", "v_rcp_f32", "v_rsq_f32", "v_sqrt_f32", "v_sin_f32", "v_cos_f32",
         "v_rcp_iflag_f32", "v_exp_f16", "v_log_f16", "v_rcp_f16", "v_rsq_f16", "v_sqrt_f16"}

_REG = re.compile(r"^(-|\|)?(abs\()?([vsa])(\d+|\[(\d+):(\d+)\])\)?\|?$")


def regs_of(tok):
    tok = tok.strip()
    if tok in ("vcc", "vcc_lo", "vcc_hi"):
        return [("s", "vcc")]
    if tok in ("exec",):
        return [("s", "exec")]
    if tok == "m0":
        return [("s", "m0")]
    m = _REG.match(tok)
    if not m:
        return []
    kind = m.group(3)
    if m.group(5) is not None:
        return [(kind, i) for i in range(int(m.group(5)), int(m.group(6)) + 1)]
    return [(kind, int(m.group(4)))]


def split_ops(s):
    out, depth, cur = [], 0, ""
    for ch in s:
        if ch in "[(":
            depth += 1
        if ch in "])":
            depth -= 1
        if ch == "," and depth == 0:
            out.append(cur.strip()); cur = ""
        else:
            cur += ch
    if cur.strip():
        out.append(cur.strip())
    return out


def mfma_passes(mn):
    if "32x32x16" in mn or "32x32x8" in mn or "32x32x32" in mn:
        return 8
    if "16x16x32" in mn or "16x16x16" in mn or "16x16x64" in mn:
        return 4
    if "32x32x2" in mn:
        return 16
    if "16x16x4" in mn:
        return 8
    raise ValueError(mn)


class Asm:
    def __init__(self):
        self.lines = []
        self.hist = []
        self.maxv = -1
        self.maxs = -1

    def raw(self, s):
        self.lines.append(s)

    def label(self, name):
        self.lines.append(f"{name}:")

    def barrier_hazards(self, n=16):
        self.emit(f"s_nop {n - 1}" if n <= 16 else "s_nop 15")

    def _parse(self, text):
        t = text.split(";")[0].strip()
        parts = t.split(None, 1)
        mn = parts[0]
        rest = parts[1] if len(parts) > 1 else ""
        ops = split_ops(rest)
        mods = []
        if ops:
            last = ops[-1].split()
            if len(last) > 1:
                ops[-1] = last[0]
                mods = last[1:]
        base = re.sub(r"_(e32|e64|dpp|sdwa)$", "", mn)
        info = dict(mn=base, dst=[], src=[], kind="other", dpp=mn.endswith("_dpp") or any(
            m.startswith(("quad_perm", "row_", "wave_")) for m in mods), mods=mods, ws=1)
        R = [regs_of(o) for o in ops]
        flat = lambda L: [r for x in L for r in x]
        if base.startswith("v_mfma"):
            info.update(kind="mfma", dst=R[0], src=flat(R[1:]), srcab=flat(R[1:3]), srcc=R[3],
                        passes=mfma_passes(base))
        elif base.startswith("v_"):
            info["kind"] = "trans" if base in TRANS else "valu"
            if base.startswith("v_cmp"):
                info.update(dst=R[0], src=flat(R[1:]))
            elif "permlane" in base and "swap" in base:
                info.update(dst=flat(R), src=flat(R), perm=True)
            elif base in ("v_readfirstlane_b32", "v_readlane_b32"):
                info.update(dst=R[0], src=flat(R[1:]), rl=True)
            elif base in ("v_add_co_u32", "v_sub_co_u32", "v_addc_co_u32", "v_subb_co_u32"):
                info.update(dst=R[0] + R[1], src=flat(R[2:]))
            elif base.startswith(("v_fmac", "v_pk_fmac", "v_dot2c")):
                info.update(dst=R[0], src=flat(R))
            else:
                info.update(dst=R[0], src=flat(R[1:]))
                if base == "v_cndmask_b32" and len(ops) == 3:
                    info["src"] = info["src"] + [("s", "vcc")]
        elif base.startswith("ds_"):
            info["kind"] = "ds"
            if base.startswith(("ds_read", "ds_bpermute", "ds_permute", "ds_swizzle")):
                info.update(dst=R[0], src=flat(R[1:]))
            else:
                info.update(src=flat(R))
        elif base.startswith(("buffer_", "global_")):
            info["kind"] = "vmem"
            lds = "lds" in mods
            if "load" in base and not lds:
                info.update(dst=R[0], src=flat(R[1:]))
            else:
                info.update(src=flat(R))
            if lds:
                info["dma"] = True
            if "store" in base and ("x4" in base or "x3" in base):
                info["widedata"] = R[0] if base.startswith("buffer") else R[1]
        elif base.startswith("s_"):
            info["kind"] = "salu"
            if base == "s_nop":
                info["ws"] = int(ops[0], 0) + 1
            elif base.startswith(("s_cmp", "s_waitcnt", "s_barrier", "s_branch", "s_cbranch", "s_endpgm",
                                  "s_setprio", "s_sleep")):
                info.update(src=flat(R))
            else:
                info.update(dst=R[0] if R else [], src=flat(R[1:]))
        for k, i in info["dst"] + info["src"]:
            if k == "v" and isinstance(i, int):
                self.maxv = max(self.maxv, i)
            if k == "s" and isinstance(i, int):
                self.maxs = max(self.maxs, i)
        return info

    def _need(self, cur):
        need = 0
        dist = 0
        for p in reversed(self.hist):
            if dist >= 96:
                break
            pd = set(p["dst"])
            cs, cd = set(cur["src"]), set(cur["dst"])
            req = 0
            pk, ck = p["kind"], cur["kind"]
            pvalu = pk in ("valu", "trans")
            cvalu = ck in ("valu", "trans")
            vhit = {r for r in pd & cs if r[0] in "va"}
            shit = {r for r in pd & cs if r[0] == "s"}
            if pvalu and vhit:
                if cvalu and (cur.get("dpp") or cur.get("perm")):
                    req = max(req, 2)
                if ck == "mfma":
                    req = max(req, 6)
                if cur.get("rl"):
                    req = max(req, 1)
                if pk == "trans" and ck == "valu":
                    req = max(req, 1)
                if pk == "trans" and ck in ("mfma",):
                    req = max(req, 2)
            if pvalu and shit:
                if cvalu:
                    req = max(req, 4 if cur.get("rl") else 2)
                if ck == "vmem":
                    req = max(req, 5)
                if ck == "salu":
                    req = max(req, 1)
            if pk == "mfma":
                n = {2: 5, 4: 8, 8: 12, 16: 20}[p["passes"]]
                if ck != "mfma":
                    n = {2: 16, 4: 32, 8: 56, 16: 80}[p["passes"]]
                if ck == "mfma":
                    if pd & set(cur["srcab"]):
                        req = max(req, n)
                    cc = set(cur["srcc"])
                    if pd & cc:
                        if pd == cc and p["passes"] == cur["passes"]:
                            pass
                        else:
                            req = max(req, n - 2)
                    if (pd & cd) and not (pd == cd):
                        req = max(req, n)
                elif (pd & cs) or (pd & cd):
                    req = max(req, n)
                if cvalu and set(p["srcc"]) & cd:
                    req = max(req, {2: 1, 4: 3, 8: 7, 16: 15}[p["passes"]])
            if p.get("widedata") and cvalu and set(p["widedata"]) & cd:
                req = max(req, 2)
            if pk == "salu" and ("s", "m0") in pd and cur.get("dma"):
                req = max(req, 1)
            if req > dist:
                need = max(need, req - dist)
            dist += p["ws"]
        return need

    def emit(self, text):
        for line in text.strip("\n").split("\n"):
            s = line.strip()
            if not s or s.startswith(";"):
                if s:
                    self.lines.append("    " + s)
                continue
            if s.endswith(":") and " " not in s:
                self.label(s[:-1]); continue
            cur = self._parse(s)
            n = self._need(cur)
            while n > 0:
                k = min(n, 16)
                self.lines.append(f"    s_nop {k - 1}")
                self.hist.append(dict(mn="s_nop", dst=[], src=[], kind="salu", ws=k))
                n -= k
            self.lines.append("    " + s)
            self.hist.append(cur)
            if len(self.hist) > 256:
                self.hist = self.hist[-128:]

    __call__ = emit

    def text(self):
        return "\n".join(self.lines) + "\n"


def f32bits(x):
    import struct
    return struct.unpack("<I", struct.pack("<f", x))[0]


def hexf(x):
    return "0x%08x" % f32bits(x)
```

```python
from asmlib import Asm, hexf
from gen import *
import math

NG1 = 224
NCONV = 512
LDS_MID = 81920


def gen_gemm1(a):
    a("s_and_b32 s40, s2, 7")
    a("s_lshr_b32 s41, s2, 3")
    a("s_mul_i32 s42, s41, 37")
    a("s_lshr_b32 s42, s42, 8")
    a("s_mul_i32 s43, s42, 7")
    a("s_sub_u32 s43, s41, s43")
    a("s_lshr_b32 s44, s40, 1")
    a("s_lshl_b32 s44, s44, 2")
    a("s_add_u32 s44, s44, s42")
    a("s_and_b32 s45, s40, 1")
    a("s_mul_i32 s45, s45, 7")
    a("s_add_u32 s45, s45, s43")
    a("s_cmp_lt_u32 s46, 4")
    a("s_cbranch_scc1 G1_compute")
    a("s_sub_u32 s46, s46, 4")
    a("v_and_b32 v2, 3, v2")
    a("v_lshrrev_b32 v3, 4, v1")
    a("v_and_b32 v4, 1, v2")
    a("v_lshl_add_u32 v4, v4, 2, v3")
    a("v_and_b32 v5, 7, v1")
    a("v_xor_b32 v4, v4, v5")
    a("v_lshlrev_b32 v4, 4, v4")
    a("v_lshrrev_b32 v5, 3, v1")
    a("v_lshl_add_u32 v10, v5, 10, v4")
    a("v_lshlrev_b32 v4, 2, v3")
    a("v_and_b32 v5, 15, v1")
    a("v_xor_b32 v4, v4, v5")
    a("v_lshlrev_b32 v4, 4, v4")
    a("v_mul_u32_u24 v5, 3584, v3")
    a("v_add_u32 v11, v4, v5")
    a("s_lshl_b32 s48, s44, 17")
    a("s_lshl_b32 s50, s46, 13")
    a("s_add_u32 s48, s48, s50")
    a("s_mul_i32 s49, s46, 14336")
    a("s_lshl_b32 s50, s45, 8")
    a("s_add_u32 s49, s49, s50")
    a("s_lshl_b32 s51, s46, 10")
    a("s_lshl_b32 s60, s42, 1")
    a("s_add_u32 s60, s60, s43")
    a("s_and_b32 s60, s60, 7")
    a("s_mov_b32 s61, s60")

    a(f"s_add_u32 s47, s51, {5*16384}")
    a("s_mov_b32 s65, 0")

    def adv():
        a("s_add_u32 s51, s51, 16384")
        a(f"s_sub_u32 s66, s51, {5*16384}")
        a("s_cmp_ge_u32 s51, s47")
        a("s_cselect_b32 s51, s66, s51")

    def itemA():
        a("s_lshl_b32 s62, s60, 7")
        a("s_add_u32 s62, s62, s48")
        for jj in range(4):
            a(f"s_add_u32 s52, s62, {jj*32768}")
            a(f"s_add_u32 m0, s51, {jj*4096}")
            a("buffer_load_dwordx4 v10, s[24:27], s52 offen lds")
        a("s_add_u32 s60, s60, 1")
        a("s_and_b32 s60, s60, 7")
        adv()

    def itemB():
        a(f"s_mul_i32 s63, s61, {64*3584}")
        a("s_add_u32 s63, s63, s49")
        for jj in range(4):
            a(f"s_add_u32 s52, s63, {jj*16*3584}")
            a(f"s_add_u32 m0, s51, {jj*4096}")
            a("buffer_load_dwordx4 v11, s[28:31], s52 offen lds")
        a("s_add_u32 s61, s61, 1")
        a("s_and_b32 s61, s61, 7")
        adv()

    itemA()
    a("s_branch G1L_pair")
    a("G1L_loop:")
    a("s_waitcnt vmcnt(4)")
    a("s_barrier")
    a("G1L_pair:")
    a.hist = []
    itemB()
    itemA()
    a("s_add_u32 s65, s65, 1")
    a("s_cmp_lt_u32 s65, 2")
    a("s_cbranch_scc1 G1L_pair")
    a("s_cmp_lg_u32 s65, 2")
    a("s_cbranch_scc1 G1L_next")
    a("s_waitcnt vmcnt(12)")
    a("s_barrier")
    a("G1L_next:")
    a("s_cmp_lt_u32 s65, 7")
    a("s_cbranch_scc1 G1L_loop")
    a("s_waitcnt vmcnt(4)")
    a("s_barrier")
    itemB()
    a("s_waitcnt vmcnt(0)")
    a("s_barrier")
    endpgm(a, 1)
    a("G1_compute:")
    a.hist = []
    a("v_and_b32 v4, 31, v1")
    a("v_lshrrev_b32 v5, 5, v1")
    a("v_bfe_u32 v6, v1, 1, 3")
    a("v_xor_b32 v6, v6, v5")
    a("v_lshlrev_b32 v6, 4, v6")
    a("v_and_b32 v7, 1, v2")
    a("v_lshl_add_u32 v7, v7, 6, v4")
    a("v_lshl_add_u32 v12, v7, 7, v6")
    for kk in range(1, 4):
        a(f"v_xor_b32 v{12+kk}, {32*kk}, v12")
    a("v_bfe_u32 v4, v1, 2, 2")
    a("v_lshrrev_b32 v6, 5, v1")
    a("v_lshl_add_u32 v6, v6, 3, v4")
    a("v_lshlrev_b32 v6, 8, v6")
    a("v_bfe_u32 v7, v1, 4, 1")
    a("v_lshl_add_u32 v6, v7, 5, v6")
    a("v_and_b32 v7, 3, v1")
    a("v_lshl_add_u32 v6, v7, 3, v6")
    a("v_and_b32 v7, 2, v2")
    a("v_xor_b32 v8, v7, v4")
    a("v_lshl_add_u32 v16, v8, 6, v6")
    a("v_or_b32 v7, 1, v7")
    a("v_xor_b32 v8, v7, v4")
    a("v_lshl_add_u32 v17, v8, 6, v6")
    a("v_lshrrev_b32 v6, 1, v2")
    a("v_lshlrev_b32 v6, 7, v6")
    a("v_lshl_add_u32 v3, v5, 3, v6")
    a("s_lshl_b32 s50, s45, 8")
    a("v_and_b32 v4, 31, v1")
    a("v_and_b32 v7, 1, v2")
    a("v_lshl_add_u32 v7, v7, 6, v4")
    a("v_mul_u32_u24 v7, 3584, v7")
    a("v_add_u32 v7, v6, v7")
    a("v_lshl_add_u32 v7, v5, 4, v7")
    a("s_mul_i32 s52, s44, 128*3584")
    a("s_add_u32 s52, s52, s50")
    a(f"s_add_u32 s52, s52, {hex(HH)}")
    a(f"s_add_u32 s53, s52, {32*3584}")
    c0 = -2.0 * math.sqrt(2.0 / math.pi) * math.log2(math.e)
    a(f"s_mov_b32 s55, {hexf(c0 * 0.044715)}")
    a(f"v_mov_b32 v8, {hexf(c0)}")
    for r in range(64, 128, 2):
        a(f"v_mov_b64 v[{r}:{r+1}], 0")
    ACC = lambda ni, mi: 64 + 32 * ni + 16 * mi
    XF = lambda s, mi: 32 + 16 * s + 4 * mi
    WF = lambda s, ni: 40 + 16 * s + 4 * ni
    BR = [4, 10, 24, 26, 28, 30, 12, 14]
    a("s_mov_b32 s60, 0")
    a("s_mov_b32 s65, 0")

    def reads(kk):
        s = kk & 1
        for mi in range(2):
            a(f"ds_read_b128 v[{XF(s,mi)}:{XF(s,mi)+3}], v{18+kk} offset:{4096*mi}")
        for ni in range(2):
            for hf in range(2):
                a(f"ds_read_b64_tr_b16 v[{WF(s,ni)+2*hf}:{WF(s,ni)+2*hf+1}], v{22+ni} offset:{(16*kk+4*hf)*256}")

    a("G1C_loop:")
    a("s_add_u32 s61, s60, 16384")
    a(f"s_cmp_eq_u32 s61, {5*16384}")
    a("s_cselect_b32 s61, 0, s61")
    for i in range(4):
        a(f"v_add_u32 v{18+i}, s60, v{12+i}")
    for i in range(2):
        a(f"v_add_u32 v{22+i}, s61, v{16+i}")
    a("s_add_u32 s60, s61, 16384")
    a(f"s_cmp_eq_u32 s60, {5*16384}")
    a("s_cselect_b32 s60, 0, s60")
    a("s_barrier")
    if PROF:
        a("s_cmp_lg_u32 s65, 0")
        a("s_cbranch_scc1 G1C_nostamp")
        stamp_mid(a, 0)
        a("G1C_nostamp:")
    reads(0)
    a("s_add_u32 s65, s65, 1")
    for kk in range(4):
        if kk < 3:
            reads(kk + 1)
        a(f"s_waitcnt lgkmcnt({6 if kk < 3 else 0})")
        s = kk & 1
        for ni in range(2):
            for mi in range(2):
                c = ACC(ni, mi)
                a(f"v_mfma_f32_32x32x16_bf16 v[{c}:{c+15}], v[{WF(s,ni)}:{WF(s,ni)+3}], v[{XF(s,mi)}:{XF(s,mi)+3}], v[{c}:{c+15}]")
    a("s_cmp_lt_u32 s65, 8")
    a("s_cbranch_scc1 G1C_loop")
    stamp_mid(a, 1)
    for i in range(8):
        a(f"buffer_load_dwordx2 v[{BR[i]}:{BR[i]+1}], v3, s[32:35], s50 offen offset:{64*(i>>2)+16*(i&3)}")
    a("s_mov_b32 s65, 0")
    T0, BU = 32, 48
    c = 64
    a("s_nop 15")
    a("s_nop 15")
    a("s_nop 15")
    a("s_waitcnt vmcnt(0)")
    a("G1E_loop:")
    a.hist = []
    for qq in range(4):
        for j in range(2):
            src = BR[qq] + j
            a(f"v_lshlrev_b32 v{BU+4*qq+2*j}, 16, v{src}")
            a(f"v_and_b32 v{BU+4*qq+2*j+1}, s64, v{src}")
    for j in range(8):
        a(f"v_cvt_pk_bf16_f32 v{T0+j}, v{c+2*j}, v{c+2*j+1}")
    for j in range(8):
        a(f"v_lshlrev_b32 v{c+2*j}, 16, v{T0+j}")
        a(f"v_and_b32 v{c+2*j+1}, s64, v{T0+j}")
    for j in range(8):
        a(f"v_pk_add_f32 v[{c+2*j}:{c+2*j+1}], v[{c+2*j}:{c+2*j+1}], v[{BU+2*j}:{BU+2*j+1}]")
    for j in range(8):
        a(f"v_cvt_pk_bf16_f32 v{T0+j}, v{c+2*j}, v{c+2*j+1}")
    for j in range(8):
        a(f"v_lshlrev_b32 v{c+2*j}, 16, v{T0+j}")
        a(f"v_and_b32 v{c+2*j+1}, s64, v{T0+j}")
    for j in range(8):
        a(f"v_pk_mul_f32 v[{T0+2*j}:{T0+2*j+1}], v[{c+2*j}:{c+2*j+1}], v[{c+2*j}:{c+2*j+1}]")
    for r in range(16):
        a(f"v_fma_f32 v{T0+r}, v{T0+r}, s55, v8")
    for j in range(8):
        a(f"v_pk_mul_f32 v[{T0+2*j}:{T0+2*j+1}], v[{T0+2*j}:{T0+2*j+1}], v[{c+2*j}:{c+2*j+1}]")
    for r in range(16):
        a(f"v_exp_f32 v{T0+r}, v{T0+r}")
    for r in range(16):
        a(f"v_add_f32 v{T0+r}, 1.0, v{T0+r}")
    for r in range(16):
        a(f"v_rcp_f32 v{T0+r}, v{T0+r}")
    for j in range(8):
        a(f"v_pk_mul_f32 v[{T0+2*j}:{T0+2*j+1}], v[{T0+2*j}:{T0+2*j+1}], v[{c+2*j}:{c+2*j+1}]")
    for j in range(8):
        a(f"v_cvt_pk_bf16_f32 v{BU+j}, v{T0+2*j}, v{T0+2*j+1}")
    for p in range(2):
        a(f"v_permlane32_swap_b32 v{BU+4*p}, v{BU+2+4*p}")
        a(f"v_permlane32_swap_b32 v{BU+1+4*p}, v{BU+3+4*p}")
    for p in range(2):
        a(f"buffer_store_dwordx4 v[{BU+4*p}:{BU+3+4*p}], v7, s[24:27], s52 offen offset:{32*p}")
    for r in range(64, 112, 2):
        a(f"v_mov_b64 v[{r}:{r+1}], v[{r+16}:{r+17}]")
    a("s_add_u32 s65, s65, 1")
    a(f"s_add_u32 s52, s52, {32*3584}")
    a("s_cmp_lg_u32 s65, 2")
    a("s_cbranch_scc1 G1E_same")
    a(f"s_sub_u32 s52, s52, {64*3584 - 64}")
    for qq in range(4):
        a(f"v_mov_b64 v[{BR[qq]}:{BR[qq]+1}], v[{BR[4+qq]}:{BR[4+qq]+1}]")
    a("G1E_same:")
    a("s_cmp_lt_u32 s65, 4")
    a("s_cbranch_scc1 G1E_loop")
    endpgm(a, 1)


WND = 0
XM = 65536


def gen_conv(a):
    a(f"s_sub_u32 s3, s2, {NG1}")
    a("v_sub_u32 v3, 2079, v1")
    a("v_and_b32 v4, 1, v3")
    a("v_and_b32 v3, 0xfffffffe, v3")
    a("v_lshlrev_b32 v3, 1, v3")
    a(f"s_mov_b32 s40, {hex(KR2 - KR)}")
    a("v_mul_lo_u32 v4, v4, s40")
    a("v_add_u32 v3, v3, v4")
    a(f"s_mul_i32 s40, s3, {KRS}")
    a(f"s_add_u32 s40, s40, {hex(KR)}")
    a("s_lshl_b32 s41, s46, 7")
    a("s_sub_u32 s40, s40, s41")
    a("s_lshl_b32 s41, s46, 10")
    for jj in range(4):
        a(f"s_sub_u32 s42, s40, {1024*jj}")
        a(f"s_add_u32 m0, s41, {8192*jj}")
        a("buffer_load_dwordx4 v3, s[24:27], s42 offen lds")
    a("s_cmp_lg_u32 s46, 0")
    a("s_cbranch_scc1 C_skip33")
    a(f"s_sub_u32 s42, s40, {1024*4}")
    a(f"s_mov_b32 m0, {8192*4}")
    a("s_nop 0")
    a("buffer_load_dwordx4 v3, s[24:27], s42 offen lds")
    a("C_skip33:")
    a("v_mov_b32 v5, 0")
    a("s_lshl_b32 s44, s3, 1")
    a("buffer_load_ushort v20, v5, s[36:39], s44 offen")
    a("s_lshl_b32 s44, s3, 2")
    a(f"s_add_u32 s44, s44, {hex(KINV)}")
    a("buffer_load_dword v21, v5, s[24:27], s44 offen")
    a("v_and_b32 v4, 255, v0")
    a("v_lshrrev_b32 v5, 2, v4")
    a("v_mul_u32_u24 v5, 80, v5")
    a("v_and_b32 v6, 3, v4")
    a("v_lshl_add_u32 v5, v6, 4, v5")
    a(f"v_add_u32 v5, {XM + 32*80}, v5")
    a("v_lshlrev_b32 v4, 4, v4")
    a("s_lshl_b32 s43, s3, 12")
    a(f"s_add_u32 s43, s43, {hex(XT)}")
    for r in range(8, 12):
        a(f"v_mov_b32 v{r}, 0")
    a("s_cmp_ge_u32 s46, 4")
    a("s_cbranch_scc1 C_zero")
    a("buffer_load_dwordx4 v[8:11], v4, s[24:27], s43 offen")
    a("s_branch C_join")
    a("C_zero:")
    a(f"v_add_u32 v5, {XM}, v4")
    a("v_min_u32 v5, " + str(XM + 159 * 16) + ", v5")
    a("C_join:")
    a.hist = []
    a("v_and_b32 v6, 31, v1")
    a("v_lshrrev_b32 v7, 5, v1")
    a("v_lshlrev_b32 v16, 4, v6")
    a("v_lshlrev_b32 v17, 7, v7")
    a("v_sub_u32 v16, v16, v17")
    a("v_add_u32 v16, 256, v16")
    a("v_lshl_add_u32 v16, v2, 9, v16")
    a("v_add_u32 v17, 8, v6")
    a("v_sub_u32 v17, v17, v2")
    a("v_mul_u32_u24 v17, 80, v17")
    a("v_lshl_add_u32 v17, v7, 4, v17")
    a(f"v_add_u32 v17, {XM}, v17")
    for r in range(64, 96, 2):
        a(f"v_mov_b64 v[{r}:{r+1}], 0")
    a("s_waitcnt vmcnt(0)")
    a(f"ds_write_b128 v5, v[8:11]")
    a("s_waitcnt lgkmcnt(0)")
    a("s_barrier")
    stamp_mid(a, 0)
    FR = lambda s, i: 32 + 16 * s + 4 * i

    def reads(h, s):
        ao = 256 * (1 - h)
        bo = 24 * 80 + 32 * h
        a(f"ds_read_b128 v[{FR(s,0)}:{FR(s,0)+3}], v16 offset:{ao}")
        a(f"ds_read_b128 v[{FR(s,2)}:{FR(s,2)+3}], v17 offset:{bo}")
        a(f"ds_read_b128 v[{FR(s,1)}:{FR(s,1)+3}], v16 offset:{ao + 32*512}")
        a(f"ds_read_b128 v[{FR(s,3)}:{FR(s,3)+3}], v17 offset:{bo + 32*80}")

    def mm(s):
        f = lambda i: f"v[{FR(s,i)}:{FR(s,i)+3}]"
        a(f"v_mfma_f32_32x32x16_f16 v[64:79], {f(0)}, {f(2)}, v[64:79]")
        a(f"v_mfma_f32_32x32x16_f16 v[80:95], {f(1)}, {f(2)}, v[80:95]")
        a(f"v_mfma_f32_32x32x16_f16 v[80:95], {f(0)}, {f(3)}, v[80:95]")

    reads(0, 0)
    a("s_mov_b32 s65, 0")
    a("CV_loop:")
    reads(1, 1)
    a("v_add_u32 v16, 4096, v16")
    a(f"v_subrev_u32 v17, {8*80}, v17")
    a("s_waitcnt lgkmcnt(4)")
    mm(0)
    reads(0, 0)
    a("s_add_u32 s65, s65, 1")
    a("s_waitcnt lgkmcnt(4)")
    mm(1)
    a("s_cmp_lt_u32 s65, 4")
    a("s_cbranch_scc1 CV_loop")
    a("s_waitcnt lgkmcnt(0)")
    a("v_lshlrev_b32 v4, 4, v1")
    a("v_lshl_add_u32 v5, v2, 10, v4")
    a("v_lshl_add_u32 v4, v2, 13, v4")
    a("v_lshrrev_b32 v8, 2, v2")
    a("v_lshl_add_u32 v8, v8, 5, v6")
    a("v_and_b32 v9, 3, v2")
    a("v_lshlrev_b32 v9, 4, v9")
    a("v_lshl_add_u32 v9, v7, 3, v9")
    a("v_mul_u32_u24 v10, 80, v8")
    a("v_add_u32 v10, v10, v9")
    a(f"v_add_u32 v10, {XM + 32*80}, v10")
    a("v_lshl_add_u32 v11, v8, 6, v9")
    a("s_lshl_b32 s43, s3, 12")
    a(f"s_add_u32 s43, s43, {hex(ST)}")
    a("s_barrier")
    stamp_mid(a, 1)
    for q in range(8):
        a(f"ds_write_b128 v4, v[{64+4*q}:{67+4*q}] offset:{1024*q}")
    a("ds_read_b64 v[22:23], v10")
    a("v_lshlrev_b32 v20, 16, v20")
    a(f"v_mul_f32 v20, {hexf(1/1024)}, v20")
    a("s_waitcnt lgkmcnt(0)")
    a("s_barrier")
    for w in range(8):
        a(f"ds_read_b128 v[{32+4*w}:{35+4*w}], v5 offset:{8192*w}")
    b = 64
    for e2 in range(2):
        a(f"v_cvt_f32_f16 v{b+4+2*e2}, v{22+e2}")
        a(f"v_lshrrev_b32 v{b+5+2*e2}, 16, v{22+e2}")
    for e2 in range(2):
        a(f"v_cvt_f32_f16 v{b+5+2*e2}, v{b+5+2*e2}")
    for e in range(4):
        a(f"v_mul_f32 v{b+4+e}, v{b+4+e}, v20")
    for e2 in range(2):
        a(f"v_cvt_pk_bf16_f32 v{b+10+e2}, v{b+4+2*e2}, v{b+5+2*e2}")
    for e2 in range(2):
        a(f"v_lshlrev_b32 v{b+4+2*e2}, 16, v{b+10+e2}")
        a(f"v_and_b32 v{b+5+2*e2}, s64, v{b+10+e2}")
    a("s_waitcnt lgkmcnt(0)")
    for w in range(0, 8, 2):
        for e in range(4):
            a(f"v_add_f32 v{32+4*w+e}, v{32+4*w+e}, v{36+4*w+e}")
    for w in range(0, 8, 4):
        for e in range(4):
            a(f"v_add_f32 v{32+4*w+e}, v{32+4*w+e}, v{40+4*w+e}")
    for e in range(4):
        a(f"v_add_f32 v{b+e}, v{32+e}, v{48+e}")
    for e in range(4):
        a(f"v_mul_f32 v{b+e}, v{b+e}, v21")
    for e2 in range(2):
        a(f"v_cvt_pk_bf16_f32 v{b+8+e2}, v{b+2*e2}, v{b+2*e2+1}")
    for e2 in range(2):
        a(f"v_lshlrev_b32 v{b+2*e2}, 16, v{b+8+e2}")
        a(f"v_and_b32 v{b+2*e2+1}, s64, v{b+8+e2}")
    for e in range(4):
        a(f"v_add_f32 v{b+e}, v{b+e}, v{b+4+e}")
    for e2 in range(2):
        a(f"v_cvt_pk_bf16_f32 v{b+8+e2}, v{b+2*e2}, v{b+2*e2+1}")
    a(f"buffer_store_dwordx2 v[{b+8}:{b+9}], v11, s[24:27], s43 offen")
    endpgm(a, 1)


def gen_mid():
    a = Asm()
    kernel_head(a, "mid_kernel")
    a(f"s_cmp_ge_u32 s2, {NG1 + NCONV}")
    a("s_cbranch_scc1 M_done")
    stamp_start(a)
    a("s_load_dwordx2 s[4:5], s[0:1], 112")
    a("s_load_dwordx4 s[8:11], s[0:1], 64")
    a("s_load_dwordx2 s[6:7], s[0:1], 48")
    a("v_and_b32 v1, 63, v0")
    a("v_lshrrev_b32 v2, 6, v0")
    a("s_mov_b32 s64, 0xffff0000")
    a("v_readfirstlane_b32 s46, v2")
    a("s_waitcnt lgkmcnt(0)")
    srd(a, 24, 4, WS_USED)
    srd(a, 28, 8, 512 * 1792 * 2)
    srd(a, 32, 10, 1792 * 2)
    srd(a, 36, 6, 512 * 2)
    a(f"s_cmp_ge_u32 s2, {NG1}")
    a("s_cbranch_scc1 M_conv")
    if os.environ.get("ROLE") == "conv":
        a("s_endpgm")
    gen_gemm1(a)
    a("M_conv:")
    a.hist = []
    if os.environ.get("ROLE") == "g1":
        a("s_endpgm")
    gen_conv(a)
    a("M_done:")
    a("s_endpgm")
    return a, f"; @launch kernel=mid_kernel grid=({NG1+NCONV},1,1) block=(512,1,1) lds={LDS_MID}"
```

```python
from asmlib import Asm, hexf
from gen import *
import math

NG2 = 256
NST = 5
LDS_FIN = NST * 32768
NKS = 14


def gen_fin():
    a = Asm()
    kernel_head(a, "fin_kernel")
    a(f"s_cmp_ge_u32 s2, {NG2}")
    a("s_cbranch_scc1 F_done")
    stamp_start(a)
    a("s_load_dwordx2 s[4:5], s[0:1], 112")
    a("s_load_dwordx4 s[8:11], s[0:1], 80")
    a("s_load_dwordx2 s[6:7], s[0:1], 0")
    a("s_load_dwordx2 s[12:13], s[0:1], 96")
    a("v_and_b32 v1, 63, v0")
    a("v_lshrrev_b32 v2, 6, v0")
    a("s_mov_b32 s64, 0xffff0000")
    a("v_readfirstlane_b32 s46, v2")
    a("s_and_b32 s40, s2, 7")
    a("s_lshr_b32 s41, s2, 3")
    a("s_lshr_b32 s44, s41, 3")
    a("s_lshl_b32 s40, s40, 2")
    a("s_add_u32 s44, s44, s40")
    a("s_and_b32 s45, s41, 7")
    a("s_cmp_lt_u32 s46, 4")
    a("s_cbranch_scc1 F_compute")
    a("s_sub_u32 s46, s46, 4")
    a("v_and_b32 v2, 3, v2")
    a("v_lshrrev_b32 v3, 4, v1")
    a("v_lshl_add_u32 v4, v2, 2, v3")
    a("v_and_b32 v5, 15, v1")
    a("v_xor_b32 v4, v4, v5")
    a("v_lshlrev_b32 v4, 4, v4")
    a("v_mul_u32_u24 v5, 3584, v3")
    a("v_add_u32 v10, v4, v5")
    a("v_and_b32 v4, 1, v3")
    a("v_lshlrev_b32 v4, 2, v4")
    a("v_and_b32 v5, 7, v1")
    a("v_xor_b32 v4, v4, v5")
    a("v_lshlrev_b32 v4, 4, v4")
    a("v_lshrrev_b32 v5, 3, v1")
    a("v_lshl_add_u32 v11, v5, 10, v4")
    a("s_lshl_b32 s48, s44, 6")
    a("s_lshl_b32 s50, s46, 2")
    a("s_add_u32 s48, s48, s50")
    a("s_mul_i32 s48, s48, 3584")
    a(f"s_add_u32 s48, s48, {hex(HH)}")
    a("s_lshl_b32 s49, s46, 13")
    a("s_lshl_b32 s50, s45, 7")
    a("s_add_u32 s49, s49, s50")
    a("s_lshl_b32 s51, s46, 10")
    a(f"s_add_u32 s47, s51, {NST*32768}")
    a("s_lshr_b32 s60, s41, 3")
    a("s_lshl_b32 s60, s60, 1")
    a("s_add_u32 s60, s60, s45")
    a("s_lshl_b32 s60, s60, 1")
    a("s_sub_u32 s61, s60, 14")
    a("s_cmp_ge_u32 s60, 14")
    a("s_cselect_b32 s60, s61, s60")
    a("s_mov_b32 s65, 0")
    a("s_waitcnt lgkmcnt(0)")
    srd(a, 24, 4, WS_USED)
    srd(a, 28, 8, 1792 * 512 * 2)
    a("s_branch FL_issue")
    a("FL_loop:")
    a(f"s_waitcnt vmcnt({8*(NST-2)})")
    a("s_barrier")
    a("FL_issue:")
    a.hist = []
    a("s_lshl_b32 s62, s60, 8")
    a("s_add_u32 s62, s62, s48")
    a("s_lshl_b32 s63, s60, 17")
    a("s_add_u32 s63, s63, s49")
    for jj in range(4):
        a(f"s_add_u32 s52, s62, {jj*16*3584}")
        a(f"s_add_u32 m0, s51, {jj*4096}")
        a(f"buffer_load_dwordx4 v10, s[24:27], s52 offen lds")
    for jj in range(4):
        a(f"s_add_u32 s52, s63, {(jj*32)*1024}")
        a(f"s_add_u32 m0, s51, {16384 + jj*4096}")
        a(f"buffer_load_dwordx4 v11, s[28:31], s52 offen lds")
    a("s_add_u32 s60, s60, 1")
    a("s_cmp_eq_u32 s60, 14")
    a("s_cselect_b32 s60, 0, s60")
    a("s_add_u32 s51, s51, 32768")
    a(f"s_sub_u32 s61, s51, {NST*32768}")
    a("s_cmp_ge_u32 s51, s47")
    a("s_cselect_b32 s51, s61, s51")
    a("s_add_u32 s65, s65, 1")
    a(f"s_cmp_lt_u32 s65, {NST-1}")
    a("s_cbranch_scc1 FL_issue")
    a(f"s_cmp_lt_u32 s65, {NKS}")
    a("s_cbranch_scc1 FL_loop")
    for t in range(NST - 1):
        a(f"s_waitcnt vmcnt({8*(NST-2-t)})")
        a("s_barrier")
    endpgm(a, 2)
    a("F_compute:")
    a.hist = []
    a("v_and_b32 v4, 15, v0")
    a("v_lshrrev_b32 v5, 4, v0")
    a("v_lshlrev_b32 v6, 3, v4")
    a("v_lshl_add_u32 v18, v5, 12, v6")
    a("s_lshl_b32 s53, s44, 16")
    a("s_lshl_b32 s50, s45, 7")
    a("s_add_u32 s53, s53, s50")
    a("v_lshlrev_b32 v7, 3, v5")
    a("v_lshl_add_u32 v19, v4, 14, v7")
    a("s_lshl_b32 s54, s45, 18")
    a("s_lshl_b32 s55, s44, 7")
    a("s_add_u32 s54, s54, s55")
    a(f"s_add_u32 s54, s54, {hex(ST)}")
    a("s_add_u32 s55, s54, 8192")
    a("v_add_u32 v7, 4096, v19")
    a("s_waitcnt lgkmcnt(0)")
    srd(a, 24, 4, WS_USED)
    srd(a, 32, 10, 512 * 2)
    srd(a, 36, 6, 2048 * 512 * 2)
    srd(a, 56, 12, 2048 * 512 * 2)
    for jj in range(4):
        a(f"buffer_load_dwordx2 v[{128+2*jj}:{129+2*jj}], v18, s[36:39], s53 offen offset:{1024*jj}")
    a("buffer_load_dwordx2 v[136:137], v19, s[24:27], s54 offen")
    a("buffer_load_dwordx2 v[138:139], v7, s[24:27], s54 offen")
    a("buffer_load_dwordx2 v[140:141], v19, s[24:27], s55 offen")
    a("buffer_load_dwordx2 v[142:143], v7, s[24:27], s55 offen")
    a("buffer_load_dwordx2 v[144:145], v6, s[32:35], s50 offen")
    a("v_and_b32 v4, 31, v1")
    a("v_lshrrev_b32 v5, 5, v1")
    a("v_lshl_add_u32 v6, v2, 2, v5")
    a("v_and_b32 v7, 15, v1")
    a("v_xor_b32 v8, v6, v7")
    a("v_lshlrev_b32 v8, 4, v8")
    a("v_lshl_add_u32 v12, v4, 8, v8")
    a("v_xor_b32 v13, 32, v12")
    a("v_bfe_u32 v4, v1, 2, 2")
    a("v_lshl_add_u32 v6, v5, 3, v4")
    a("v_lshl_add_u32 v6, v2, 5, v6")
    a("v_lshlrev_b32 v6, 7, v6")
    a("v_bfe_u32 v7, v1, 4, 1")
    a("v_lshl_add_u32 v6, v7, 5, v6")
    a("v_and_b32 v7, 3, v1")
    a("v_lshl_add_u32 v6, v7, 3, v6")
    a("v_add_u32 v6, 16384, v6")
    a("v_lshrrev_b32 v7, 1, v4")
    a("v_lshl_add_u32 v14, v7, 6, v6")
    a("v_xor_b32 v15, 64, v14")
    for r in range(64, 128, 2):
        a(f"v_pk_mul_f32 v[{r}:{r+1}], 0, 0" if False else f"v_mov_b64 v[{r}:{r+1}], 0")
    PW = 16 * 1056
    a("v_and_b32 v4, 31, v1")
    a("v_mul_u32_u24 v6, 528, v5")
    a("v_lshl_add_u32 v4, v4, 4, v6")
    a(f"v_mul_u32_u24 v6, {PW}, v2")
    a("v_add_u32 v16, v4, v6")
    a("v_bfe_u32 v5, v0, 3, 1")
    a("v_lshrrev_b32 v6, 7, v0")
    a("v_lshl_add_u32 v5, v5, 1, v6")
    a("v_bfe_u32 v6, v0, 1, 2")
    a("v_lshl_add_u32 v5, v5, 2, v6")
    a("v_mul_u32_u24 v5, 1056, v5")
    a("v_and_b32 v6, 1, v0")
    a("v_mul_u32_u24 v6, 528, v6")
    a("v_add_u32 v5, v5, v6")
    a("v_bfe_u32 v6, v0, 4, 3")
    a("v_lshl_add_u32 v17, v6, 6, v5")
    a("s_mov_b32 s60, 0")
    a("s_mov_b32 s65, 0")
    ACC = lambda di, mi: 64 + 32 * di + 16 * mi
    XF = lambda s, mi: 32 + 16 * s + 4 * mi
    WF = lambda s, di: 40 + 16 * s + 4 * di
    a("FC_loop:")
    for i in range(4):
        a(f"v_add_u32 v{20+i}, s60, v{12+i}")
    a("s_barrier")
    if PROF:
        a("s_cmp_lg_u32 s65, 0")
        a("s_cbranch_scc1 FC_nostamp")
        stamp_mid(a, 0)
        a("FC_nostamp:")
    for u in range(2):
        for mi in range(2):
            a(f"ds_read_b128 v[{XF(u,mi)}:{XF(u,mi)+3}], v{20+u} offset:{8192*mi}")
        for di in range(2):
            for hf in range(2):
                a(f"ds_read_b64_tr_b16 v[{WF(u,di)+2*hf}:{WF(u,di)+2*hf+1}], v{22+di} offset:{(16*u+4*hf)*128}")
    a("s_add_u32 s60, s60, 32768")
    a(f"s_cmp_eq_u32 s60, {NST*32768}")
    a("s_cselect_b32 s60, 0, s60")
    a("s_add_u32 s65, s65, 1")
    for u in range(2):
        a(f"s_waitcnt lgkmcnt({6*(1-u)})")
        for di in range(2):
            for mi in range(2):
                c = ACC(di, mi)
                a(f"v_mfma_f32_32x32x16_bf16 v[{c}:{c+15}], v[{WF(u,di)}:{WF(u,di)+3}], v[{XF(u,mi)}:{XF(u,mi)+3}], v[{c}:{c+15}]")
    a(f"s_cmp_lt_u32 s65, {NKS}")
    a("s_cbranch_scc1 FC_loop")
    stamp_mid(a, 1)
    a("s_barrier")
    for q in range(16):
        a(f"ds_write_b128 v16, v[{64+4*q}:{67+4*q}] offset:{1056*q}")
    a("s_waitcnt vmcnt(0)")
    X = lambda jj, dd: 32 + 4 * jj + dd
    S = lambda jj, dd: 48 + 4 * jj + dd
    for jj in range(4):
        for p in range(2):
            a(f"v_lshlrev_b32 v{X(jj,2*p)}, 16, v{128+2*jj+p}")
            a(f"v_and_b32 v{X(jj,2*p+1)}, s64, v{128+2*jj+p}")
    for dd in range(4):
        for p in range(2):
            a(f"v_lshlrev_b32 v{S(2*p,dd)}, 16, v{136+2*dd+p}")
            a(f"v_and_b32 v{S(2*p+1,dd)}, s64, v{136+2*dd+p}")
    for p in range(2):
        a(f"v_lshlrev_b32 v{24+2*p}, 16, v{144+p}")
        a(f"v_and_b32 v{25+2*p}, s64, v{144+p}")
    a("s_waitcnt lgkmcnt(0)")
    a("s_barrier")
    for w in range(4):
        for jj in range(4):
            a(f"ds_read_b128 v[{64+16*w+4*jj}:{67+16*w+4*jj}], v17 offset:{PW*w + 16*jj}")
    a("s_waitcnt lgkmcnt(8)")
    for j in range(8):
        a(f"v_pk_add_f32 v[{64+2*j}:{65+2*j}], v[{64+2*j}:{65+2*j}], v[{80+2*j}:{81+2*j}]")
    a("s_waitcnt lgkmcnt(0)")
    for j in range(8):
        a(f"v_pk_add_f32 v[{96+2*j}:{97+2*j}], v[{96+2*j}:{97+2*j}], v[{112+2*j}:{113+2*j}]")
    for j in range(8):
        a(f"v_pk_add_f32 v[{64+2*j}:{65+2*j}], v[{64+2*j}:{65+2*j}], v[{96+2*j}:{97+2*j}]")
    O, T = 64, 80

    def rnd(base):
        for j in range(8):
            a(f"v_cvt_pk_bf16_f32 v{T+j}, v{base+2*j}, v{base+2*j+1}")
        for j in range(8):
            a(f"v_lshlrev_b32 v{base+2*j}, 16, v{T+j}")
            a(f"v_and_b32 v{base+2*j+1}, s64, v{T+j}")

    rnd(O)
    for j in range(8):
        a(f"v_pk_add_f32 v[{O+2*j}:{O+2*j+1}], v[{O+2*j}:{O+2*j+1}], v[{24+2*(j&1)}:{25+2*(j&1)}]")
    rnd(O)
    for r in range(16):
        a(f"v_mul_f32 v{96+r}, 0xbfb8aa3b, v{O+r}")
    for r in range(16):
        a(f"v_exp_f32 v{96+r}, v{96+r}")
    for r in range(16):
        a(f"v_add_f32 v{96+r}, 1.0, v{96+r}")
    for r in range(16):
        a(f"v_rcp_f32 v{96+r}, v{96+r}")
    for j in range(8):
        a(f"v_pk_mul_f32 v[{O+2*j}:{O+2*j+1}], v[{O+2*j}:{O+2*j+1}], v[{96+2*j}:{97+2*j}]")
    rnd(O)
    for j in range(8):
        a(f"v_pk_mul_f32 v[{O+2*j}:{O+2*j+1}], v[{O+2*j}:{O+2*j+1}], v[{48+2*j}:{49+2*j}]")
    rnd(O)
    for j in range(8):
        a(f"v_pk_add_f32 v[{O+2*j}:{O+2*j+1}], v[{O+2*j}:{O+2*j+1}], v[{32+2*j}:{33+2*j}]")
    for j in range(8):
        a(f"v_cvt_pk_bf16_f32 v{T+j}, v{O+2*j}, v{O+2*j+1}")
    for jj in range(4):
        a(f"buffer_store_dwordx2 v[{T+2*jj}:{T+2*jj+1}], v18, s[56:59], s53 offen offset:{1024*jj}")
    endpgm(a, 2)
    a("F_done:")
    a("s_endpgm")
    return a, f"; @launch kernel=fin_kernel grid=({NG2},1,1) block=(512,1,1) lds={LDS_FIN}"
```

```python
import sys, os
sys.path.insert(0, os.path.dirname(os.path.abspath(__file__)))
from asmlib import Asm, hexf, f32bits
import math

XN = 0x000000
XT = 0x200000
KR = 0x400000
KRS = 4160
KR2 = 0x1000000
KINV = 0x680000
ST = 0x700000
HH = 0x900000
PROF = int(os.environ.get("PROF", "0"))
WS_USED = 0x3000000 if PROF else 0x1400000
PROFB = 0x2000000

NLN = 128
TS = 2816

DPP = "row_mask:0xf bank_mask:0xf"


def srd(a, d, base, nbytes):
    a(f"s_mov_b32 s{d}, s{base}")
    a(f"s_mov_b32 s{d+1}, s{base+1}")
    a(f"s_mov_b32 s{d+2}, {hex(nbytes)}")
    a(f"s_mov_b32 s{d+3}, 0x00020000")


def reduce_sum(a, regs, tmps):
    for mod in ("quad_perm:[1,0,3,2]", "quad_perm:[2,3,0,1]", "row_half_mirror", "row_mirror"):
        for r in regs:
            a(f"v_add_f32_dpp v{r}, v{r}, v{r} {mod} {DPP}")
    for sw in ("v_permlane16_swap_b32", "v_permlane32_swap_b32"):
        for r, t in zip(regs, tmps):
            a(f"v_mov_b32 v{t}, v{r}")
        for r, t in zip(regs, tmps):
            a(f"{sw} v{r}, v{t}")
        for r, t in zip(regs, tmps):
            a(f"v_add_f32 v{r}, v{r}, v{t}")


def kernel_head(a, name):
    a.raw(f".globl {name}")
    a.raw(".p2align 8")
    a.raw(f".type {name},@function")
    a.raw(f"{name}:")
    a.hist = []


def stamp_start(a):
    if PROF:
        a("s_memrealtime s[90:91]")


def stamp_mid(a, i):
    if PROF:
        a(f"s_memrealtime s[{92+2*i}:{93+2*i}]")
        a(f"s_memtime s[{96+2*i}:{97+2*i}]")


def endpgm(a, kidx):
    if PROF:
        a("s_waitcnt vmcnt(0)")
        a("s_memrealtime s[88:89]")
        a("s_getreg_b32 s87, hwreg(HW_REG_XCC_ID)")
        a("s_getreg_b32 s86, hwreg(HW_REG_HW_ID)")
        a("s_mov_b64 exec, -1")
        a("s_waitcnt lgkmcnt(0)")
        a("v_mov_b32 v8, s90")
        a("v_mov_b32 v9, s88")
        a("v_mov_b32 v10, s92")
        a("v_mov_b32 v11, s94")
        a("v_mov_b32 v12, s96")
        a("v_mov_b32 v13, s98")
        a("v_mov_b32 v14, s87")
        a("v_mov_b32 v15, s86")
        a("v_lshrrev_b32 v6, 6, v0")
        a("v_lshlrev_b32 v6, 5, v6")
        a("s_lshl_b32 s85, s2, 8")
        a(f"s_add_u32 s85, s85, {hex(PROFB + kidx * 0x100000)}")
        a("buffer_store_dwordx4 v[8:11], v6, s[24:27], s85 offen")
        a("buffer_store_dwordx4 v[12:15], v6, s[24:27], s85 offen offset:16")
    a("s_endpgm")


def kernel_desc(name, nv, ns=102):
    nv = (nv + 7) // 8 * 8
    return f""".p2align 6
.amdhsa_kernel {name}
  .amdhsa_next_free_vgpr {nv}
  .amdhsa_next_free_sgpr {ns}
  .amdhsa_accum_offset {nv}
  .amdhsa_group_segment_fixed_size 0
  .amdhsa_kernarg_size 120
  .amdhsa_user_sgpr_count 2
  .amdhsa_user_sgpr_kernarg_segment_ptr 1
  .amdhsa_system_sgpr_workgroup_id_x 1
.end_amdhsa_kernel
"""


def gen_prep():
    a = Asm()
    kernel_head(a, "prep_kernel")
    a(f"s_cmp_ge_u32 s2, {NLN + 512}")
    a("s_cbranch_scc1 P_done")
    stamp_start(a)
    a("s_load_dwordx2 s[4:5], s[0:1], 0")
    a("s_load_dwordx8 s[68:75], s[0:1], 8")
    a("s_load_dwordx2 s[76:77], s[0:1], 40")
    a("s_load_dwordx2 s[6:7], s[0:1], 112")
    a("v_and_b32 v1, 63, v0")
    a("v_lshrrev_b32 v2, 6, v0")
    a("s_mov_b32 s64, 0xffff0000")
    a("v_lshlrev_b32 v3, 4, v1")
    a("v_lshl_add_u32 v3, v2, 12, v3")
    a("s_lshl_b32 s3, s2, 14")
    a("s_waitcnt lgkmcnt(0)")
    srd(a, 24, 6, WS_USED)
    a(f"s_cmp_ge_u32 s2, {NLN}")
    a("s_cbranch_scc1 P_kgen")
    srd(a, 28, 4, 2048 * 512 * 2)
    P = lambda r: 8 + 4 * r
    F = lambda r, e: 24 + 8 * r + e
    S = [56 + 2 * r for r in range(4)]
    T = [57 + 2 * r for r in range(4)]
    Q = [64 + 2 * r for r in range(4)]
    for r in range(4):
        a(f"buffer_load_dwordx4 v[{P(r)}:{P(r)+3}], v3, s[28:31], s3 offen offset:{1024*r}")
    a("v_lshlrev_b32 v4, 2, v2")
    a("v_mul_u32_u24 v4, 1088, v4")
    a("v_lshl_add_u32 v4, v1, 4, v4")
    a("v_bfe_u32 v5, v1, 2, 2")
    a("v_mul_u32_u24 v5, 1088, v5")
    a("v_lshrrev_b32 v6, 4, v1")
    a("v_lshl_add_u32 v5, v6, 5, v5")
    a("v_and_b32 v6, 3, v1")
    a("v_lshl_add_u32 v5, v6, 3, v5")
    a("v_lshl_add_u32 v5, v2, 8, v5")
    a("v_lshlrev_b32 v7, 12, v1")
    a("v_lshl_add_u32 v7, v2, 19, v7")
    a("s_lshl_b32 s8, s2, 5")
    a(f"s_add_u32 s8, s8, {hex(XT)}")
    a("s_add_u32 s9, s8, 0x40000")
    for r in range(4):
        a(f"s_waitcnt vmcnt({3-r})")
        for j in range(4):
            a(f"v_lshlrev_b32 v{F(r,2*j)}, 16, v{P(r)+j}")
            a(f"v_and_b32 v{F(r,2*j+1)}, s64, v{P(r)+j}")
    for r in range(4):
        a(f"v_pk_add_f32 v[72:73], v[{F(r,0)}:{F(r,1)}], v[{F(r,2)}:{F(r,3)}]")
        a(f"v_pk_add_f32 v[74:75], v[{F(r,4)}:{F(r,5)}], v[{F(r,6)}:{F(r,7)}]")
        a(f"v_pk_add_f32 v[72:73], v[72:73], v[74:75]")
        a(f"v_add_f32 v{S[r]}, v72, v73")
    reduce_sum(a, S, T)
    for r in range(4):
        a(f"v_mul_f32 v{S[r]}, {hexf(1/512)}, v{S[r]}")
    for r in range(4):
        sp = S[r] & ~1
        sel = "op_sel_hi:[1,0]" if S[r] == sp else "op_sel:[0,1] op_sel_hi:[1,1]"
        for j in range(4):
            a(f"v_pk_add_f32 v[{72+2*j}:{73+2*j}], v[{F(r,2*j)}:{F(r,2*j+1)}], v[{sp}:{sp+1}] {sel} neg_lo:[0,1] neg_hi:[0,1]")
        a("v_pk_mul_f32 v[80:81], v[72:73], v[72:73]")
        for j in range(1, 4):
            a(f"v_pk_fma_f32 v[80:81], v[{72+2*j}:{73+2*j}], v[{72+2*j}:{73+2*j}], v[80:81]")
        a(f"v_add_f32 v{Q[r]}, v80, v81")
    reduce_sum(a, Q, T)
    for r in range(4):
        a(f"v_mul_f32 v{Q[r]}, {hexf(1/512)}, v{Q[r]}")
    for r in range(4):
        a(f"v_cvt_pk_bf16_f32 v{T[r]}, v{S[r]}, v{Q[r]}")
    for r in range(4):
        a(f"v_lshlrev_b32 v{S[r]}, 16, v{T[r]}")
        a(f"v_and_b32 v{Q[r]}, s64, v{T[r]}")
    for r in range(4):
        a(f"v_add_f32 v{Q[r]}, {hexf(1e-5)}, v{Q[r]}")
    for r in range(4):
        a(f"v_cvt_pk_bf16_f32 v{Q[r]}, v{Q[r]}, v{Q[r]}")
    for r in range(4):
        a(f"v_and_b32 v{Q[r]}, s64, v{Q[r]}")
    for r in range(4):
        a(f"v_sqrt_f32 v{Q[r]}, v{Q[r]}")
    for r in range(4):
        a(f"v_cvt_pk_bf16_f32 v{Q[r]}, v{Q[r]}, v{Q[r]}")
    for r in range(4):
        a(f"v_and_b32 v{Q[r]}, s64, v{Q[r]}")
    for r in range(4):
        a(f"v_rcp_f32 v{Q[r]}, v{Q[r]}")
    a("s_mov_b32 s12, 0x44800000")
    H16 = lambda r: 72 + 4 * r
    for r in range(4):
        sp = S[r] & ~1
        sel = "op_sel_hi:[1,0]" if S[r] == sp else "op_sel:[0,1] op_sel_hi:[1,1]"
        qp = Q[r] & ~1
        for j in range(4):
            a(f"v_pk_add_f32 v[{F(r,2*j)}:{F(r,2*j+1)}], v[{F(r,2*j)}:{F(r,2*j+1)}], v[{sp}:{sp+1}] {sel} neg_lo:[0,1] neg_hi:[0,1]")
        for j in range(4):
            a(f"v_cvt_pk_bf16_f32 v{P(r)+j}, v{F(r,2*j)}, v{F(r,2*j+1)}")
        for j in range(4):
            a(f"v_lshlrev_b32 v{F(r,2*j)}, 16, v{P(r)+j}")
            a(f"v_and_b32 v{F(r,2*j+1)}, s64, v{P(r)+j}")
        for j in range(4):
            a(f"v_pk_mul_f32 v[{F(r,2*j)}:{F(r,2*j+1)}], v[{F(r,2*j)}:{F(r,2*j+1)}], v[{qp}:{qp+1}] {sel}")
        for j in range(4):
            a(f"v_cvt_pk_bf16_f32 v{P(r)+j}, v{F(r,2*j)}, v{F(r,2*j+1)}")
        a(f"buffer_store_dwordx4 v[{P(r)}:{P(r)+3}], v3, s[24:27], s3 offen offset:{1024*r} sc1")
        for j in range(4):
            a(f"v_lshlrev_b32 v{F(r,2*j)}, 16, v{P(r)+j}")
            a(f"v_and_b32 v{F(r,2*j+1)}, s64, v{P(r)+j}")
        for j in range(4):
            a(f"v_pk_mul_f32 v[{F(r,2*j)}:{F(r,2*j+1)}], v[{F(r,2*j)}:{F(r,2*j+1)}], s[12:13] op_sel_hi:[1,0]")
        for j in range(4):
            a(f"v_cvt_pk_f16_f32 v{H16(r)+j}, v{F(r,2*j)}, v{F(r,2*j+1)}")
        a(f"ds_write_b128 v4, v[{H16(r)}:{H16(r)+3}] offset:{1088*r}")
    a("s_waitcnt lgkmcnt(0)")
    a("s_barrier")
    for q in range(2):
        for j in range(4):
            a(f"ds_read_b64_tr_b16 v[{24+8*q+2*j}:{25+8*q+2*j}], v5 offset:{4*j*1088 + 128*q}")
    for q in range(2):
        a(f"s_waitcnt lgkmcnt({4*(1-q)})")
        a(f"buffer_store_dwordx4 v[{24+8*q}:{27+8*q}], v7, s[24:27], s{8+q} offen")
        a(f"buffer_store_dwordx4 v[{28+8*q}:{31+8*q}], v7, s[24:27], s{8+q} offen offset:16")
    endpgm(a, 0)
    a("P_kgen:")
    a.hist = []
    srd(a, 28, 68, 512 * 128 * 2)
    srd(a, 32, 70, 512 * 128 * 2)
    srd(a, 36, 72, 512 * 128 * 2)
    srd(a, 40, 74, 512 * 128 * 2)
    srd(a, 48, 76, 512 * 2)
    a(f"s_sub_u32 s3, s2, {NLN}")
    a("s_lshl_b32 s8, s3, 8")
    a("s_lshl_b32 s9, s3, 1")
    a("v_mov_b32 v5, 0")
    a("buffer_load_ushort v96, v5, s[48:51], s9 offen")
    a("v_lshlrev_b32 v4, 2, v1")
    a("buffer_load_dword v98, v4, s[36:39], s8 offen")
    a("buffer_load_dword v99, v4, s[40:43], s8 offen")
    a("v_lshrrev_b32 v3, 4, v1")
    a("v_lshlrev_b32 v6, 3, v3")
    a("v_lshl_add_u32 v6, v2, 6, v6")
    for ks in range(2):
        for k in range(4):
            a(f"buffer_load_dwordx2 v[{64+8*ks+2*k}:{65+8*ks+2*k}], v6, s[{28+4*k}:{31+4*k}], s8 offen offset:{32*ks}")
    a("s_mov_b32 s60, 0x3fb8aa3b")
    a("s_mov_b32 s62, 0x32a57060")
    a(f"s_mov_b32 s66, {hexf(math.log(2))}")
    a("v_and_b32 v4, 15, v1")
    a("v_lshlrev_b32 v8, 4, v4")
    a("v_mov_b32 v9, v4")
    a("v_lshlrev_b32 v10, 1, v4")
    a("v_add_u32 v10, 256, v10")
    a("v_bfe_u32 v32, v4, 2, 1")
    a("v_lshlrev_b32 v32, 8, v32")
    a("v_and_b32 v33, 3, v4")
    a("v_lshl_add_u32 v32, v33, 2, v32")
    a("v_add_u32 v32, 512, v32")
    a("v_cmp_gt_u32 vcc, 8, v4")
    a("v_cndmask_b32 v10, v32, v10, vcc")
    a("v_lshrrev_b32 v32, 1, v4")
    a("v_lshlrev_b32 v32, 8, v32")
    a("v_and_b32 v33, 1, v4")
    a("v_lshl_add_u32 v32, v33, 3, v32")
    a("v_add_u32 v11, 1024, v32")
    a("v_mov_b32 v33, 2304")
    a("v_cmp_gt_u32 vcc, 9, v4")
    a("v_cndmask_b32 v11, v33, v11, vcc")
    for r in (8, 9, 10, 11):
        a(f"v_cvt_f32_u32 v{r}, v{r}")
    a("v_mov_b32 v30, v11")
    a("v_mov_b32 v28, v10")
    a(f"v_mul_u32_u24 v32, {TS}, v2")
    a("v_lshl_add_u32 v12, v4, 2, v32")
    a("v_lshl_add_u32 v12, v3, 8, v12")
    a("v_mov_b32 v15, 64")
    for t in (1, 2):
        a(f"v_lshrrev_b32 v33, 16, v{9+t}")
        a("v_subrev_u32 v33, 0x4280, v33")
        a(f"v_lshrrev_b32 v34, 23, v{9+t}")
        a("v_subrev_u32 v34, 134, v34")
        a(f"v_lshrrev_b32 v{15+t}, v34, v15")
        a(f"v_mul_u32_u24 v35, v{15+t}, v3")
        a("v_lshl_add_u32 v35, v35, 2, v32")
        a(f"v_lshl_add_u32 v{12+t}, v33, 2, v35")
    a("v_mov_b32 v10, v9")
    for r in range(116, 128, 2):
        a(f"v_mov_b64 v[{r}:{r+1}], 0")
    a("v_lshlrev_b32 v32, 3, v0")
    a("v_sub_u32 v32, 2047, v32")
    for e in range(9):
        a(f"v_subrev_u32 v{18+e}, {e}, v32")
    a("v_max_i32 v26, 0, v26")
    for e in range(9):
        a(f"v_cvt_f32_u32 v{32+e}, v{18+e}")
    for j in range(5):
        a(f"v_cvt_pk_bf16_f32 v{32+2*j}, v{32+2*j}, v{min(33+2*j, 40)}")
    for j in range(5):
        if j < 4:
            a(f"v_lshrrev_b32 v{33+2*j}, 16, v{32+2*j}")
        a(f"v_and_b32 v{32+2*j}, 0xffff, v{32+2*j}")
    for e in range(9):
        a(f"v_subrev_u32 v{32+e}, 0x4280, v{32+e}")
    for e in range(9):
        a(f"v_cmp_gt_u32 vcc, 128, v{18+e}")
        a(f"v_cndmask_b32 v{18+e}, v{32+e}, v{18+e}, vcc")
    for e in range(9):
        a(f"v_lshlrev_b32 v{18+e}, 2, v{18+e}")
    a("s_waitcnt vmcnt(10)")
    a("v_lshlrev_b32 v96, 16, v96")
    a("v_mul_f32 v4, s60, v96")
    a("v_fma_f32 v5, v96, s60, -v4")
    a("v_fma_f32 v5, v96, s62, v5")
    a("v_exp_f32 v4, v4")
    a("v_mul_f32 v5, s66, v5")
    a("v_fma_f32 v96, v4, v5, v4")
    a("v_cvt_pk_bf16_f32 v96, v96, v96")
    a("v_and_b32 v96, s64, v96")
    a("s_waitcnt vmcnt(8)")
    a("v_lshlrev_b32 v4, 16, v98")
    a("v_and_b32 v5, s64, v98")
    a("v_lshlrev_b32 v6, 16, v99")
    a("v_and_b32 v7, s64, v99")
    a("v_add_f32 v4, |v4|, |v5|")
    a("v_add_f32 v6, |v6|, |v7|")
    a("v_add_f32 v98, v4, v6")
    reduce_sum(a, [98], [99])
    a("v_mul_f32 v98, v98, v96")
    a("v_add_f32 v98, v98, v98")
    a("v_lshrrev_b32 v98, 23, v98")
    a("v_sub_u32 v98, 268, v98")
    a("v_min_u32 v98, 240, v98")
    a("v_sub_u32 v99, 244, v98")
    a("v_lshlrev_b32 v99, 23, v99")
    a("v_lshlrev_b32 v98, 23, v98")
    a("v_mul_f32 v98, v98, v96")
    a("v_add_f32 v98, v98, v98")
    a("v_mul_f32 v4, 0xbfb8aa3b, v96")
    a("v_mul_f32 v5, 0.15915494, v96")

    def cexp(preg):
        pp = preg & ~1
        sel = "op_sel_hi:[1,0]" if preg == pp else "op_sel:[0,1] op_sel_hi:[1,1]"
        for u in range(4):
            a(f"v_pk_mul_f32 v[{48+2*u}:{49+2*u}], v[{32+2*u}:{33+2*u}], v[{pp}:{pp+1}] {sel}")
        for u in range(4):
            a(f"v_fract_f32 v{49+2*u}, v{49+2*u}")
        for u in range(4):
            a(f"v_exp_f32 v{48+2*u}, v{48+2*u}")
            a(f"v_cos_f32 v{56+2*u}, v{49+2*u}")
            a(f"v_sin_f32 v{57+2*u}, v{49+2*u}")
        for u in range(4):
            a(f"v_pk_mul_f32 v[{56+2*u}:{57+2*u}], v[{56+2*u}:{57+2*u}], v[{48+2*u}:{49+2*u}] op_sel_hi:[1,0]")

    for ks in range(2):
        R = 64 + 8 * ks
        a(f"s_waitcnt vmcnt({4*(1-ks)})")
        for j in range(2):
            a(f"v_lshlrev_b32 v{48+2*j}, 16, v{R+j}")
            a(f"v_and_b32 v{49+2*j}, s64, v{R+j}")
        for j in range(2):
            a(f"v_pk_mul_f32 v[{52+2*j}:{53+2*j}], v[{48+2*j}:{49+2*j}], s[60:61] op_sel_hi:[1,0]")
        for j in range(2):
            a(f"v_pk_fma_f32 v[{56+2*j}:{57+2*j}], v[{48+2*j}:{49+2*j}], s[60:61], v[{52+2*j}:{53+2*j}] op_sel_hi:[1,0,1] neg_lo:[0,0,1] neg_hi:[0,0,1]")
        for j in range(2):
            a(f"v_pk_fma_f32 v[{56+2*j}:{57+2*j}], v[{48+2*j}:{49+2*j}], s[62:63], v[{56+2*j}:{57+2*j}] op_sel_hi:[1,0,1]")
        for u in range(4):
            a(f"v_exp_f32 v{52+u}, v{52+u}")
        for j in range(2):
            a(f"v_pk_mul_f32 v[{56+2*j}:{57+2*j}], v[{56+2*j}:{57+2*j}], s[66:67] op_sel_hi:[1,0]")
        for j in range(2):
            a(f"v_pk_fma_f32 v[{52+2*j}:{53+2*j}], v[{52+2*j}:{53+2*j}], v[{56+2*j}:{57+2*j}], v[{52+2*j}:{53+2*j}]")
        for j in range(2):
            a(f"v_cvt_pk_bf16_f32 v{48+j}, v{52+2*j}, v{53+2*j}")
        for j in range(2):
            a(f"v_lshlrev_b32 v{32+4*j}, 16, v{48+j}")
            a(f"v_and_b32 v{34+4*j}, s64, v{48+j}")
            a(f"v_lshlrev_b32 v{33+4*j}, 16, v{R+2+j}")
            a(f"v_and_b32 v{35+4*j}, s64, v{R+2+j}")
            a(f"v_lshlrev_b32 v{40+4*j}, 16, v{R+4+j}")
            a(f"v_and_b32 v{42+4*j}, s64, v{R+4+j}")
            a(f"v_lshlrev_b32 v{41+4*j}, 16, v{R+6+j}")
            a(f"v_and_b32 v{43+4*j}, s64, v{R+6+j}")
        for u in range(4):
            a(f"v_pk_mul_f32 v[{32+2*u}:{33+2*u}], v[{32+2*u}:{33+2*u}], v[4:5]")
            a(f"v_pk_mul_f32 v[{40+2*u}:{41+2*u}], v[{40+2*u}:{41+2*u}], v[98:99] op_sel_hi:[1,0]")
        cexp(8)
        for u in range(4):
            a(f"v_pk_mul_f32 v[{100+2*u}:{101+2*u}], v[{56+2*u}:{57+2*u}], v[{40+2*u}:{41+2*u}] op_sel_hi:[1,0] neg_hi:[0,1]")
        for u in range(4):
            a(f"v_fma_f32 v{100+2*u}, -v{41+2*u}, v{57+2*u}, v{100+2*u}")
            a(f"v_fma_f32 v{101+2*u}, -v{41+2*u}, v{56+2*u}, v{101+2*u}")
        for u in range(4):
            a(f"v_cvt_pk_f16_f32 v{108+u}, v{100+2*u}, v{101+2*u}")
        for t in range(3):
            cexp((10, 28, 30)[t])
            for u in range(4):
                a(f"v_cvt_pk_f16_f32 v{112+u}, v{56+2*u}, v{57+2*u}")
            acc = f"v[{116+4*t}:{119+4*t}]"
            a(f"v_mfma_f32_16x16x32_f16 {acc}, v[108:111], v[112:115], {acc}")
    a("v_lshlrev_b32 v4, 2, v0")
    a(f"s_mul_i32 s8, s3, {KRS}")
    a(f"s_add_u32 s12, s8, {hex(KR2)}")
    a(f"s_add_u32 s8, s8, {hex(KR)}")
    a("v_lshlrev_b32 v5, 4, v0")
    a("s_lshl_b32 s9, s3, 2")
    a(f"s_add_u32 s9, s9, {hex(KINV)}")
    for t in range(3):
        for r in range(4):
            a(f"ds_write_b32 v{12+t}, v{116+4*t+r}")
            if r < 3:
                a(f"v_add_u32 v{12+t}, v{12+t}, v{15+t}")
    a("s_waitcnt lgkmcnt(0)")
    a("s_barrier")
    for k in range(3):
        for w in range(4):
            a(f"ds_read_b32 v{32+4*k+w}, v4 offset:{TS*w + 1024*k}")
    a("s_waitcnt lgkmcnt(0)")
    for k in range(3):
        a(f"v_pk_add_f32 v[{32+4*k}:{33+4*k}], v[{32+4*k}:{33+4*k}], v[{34+4*k}:{35+4*k}]")
    for k in range(3):
        a(f"v_add_f32 v{32+4*k}, v{32+4*k}, v{33+4*k}")
    for k in range(3):
        a(f"ds_write_b32 v4, v{32+4*k} offset:{4*TS + 1024*k}")
    a("s_waitcnt lgkmcnt(0)")
    a("s_barrier")
    for e in range(9):
        a(f"ds_read_b32 v{32+e}, v{18+e} offset:{4*TS}")
    a("v_cmp_gt_u32 vcc, 255, v0")
    a("v_mov_b64 v[52:53], 0")
    a("v_mov_b64 v[54:55], 0")
    a("s_waitcnt lgkmcnt(0)")
    a("v_cndmask_b32 v40, 0, v40, vcc")
    for j in range(4):
        a(f"v_cvt_pk_f16_f32 v{44+j}, v{32+2*j}, v{33+2*j}")
        a(f"v_cvt_pk_f16_f32 v{48+j}, v{33+2*j}, v{34+2*j}")
    a("buffer_store_dwordx4 v[44:47], v5, s[24:27], s8 offen sc1")
    a("buffer_store_dwordx4 v[48:51], v5, s[24:27], s12 offen sc1")
    a("v_add_u32 v5, 4096, v5")
    a("v_cmp_gt_u32 vcc, 4, v0")
    a("s_and_saveexec_b64 s[10:11], vcc")
    a("s_cbranch_execz P_done2")
    a("buffer_store_dwordx4 v[52:55], v5, s[24:27], s8 offen")
    a("buffer_store_dwordx4 v[52:55], v5, s[24:27], s12 offen")
    a("buffer_store_dword v99, v52, s[24:27], s9 offen")
    a("P_done2:")
    endpgm(a, 0)
    a("P_done:")
    a("s_endpgm")
    return a


HEADER = """; S4D conv + GELU MLP block, gfx950.  Generated by dev/gen.py
"""


def main():
    out = sys.argv[1] if len(sys.argv) > 1 else "k.s"
    upto = int(sys.argv[2]) if len(sys.argv) > 2 else 3
    ks = []
    launches = []
    a = gen_prep()
    ks.append(("prep_kernel", a))
    launches.append(f"; @launch kernel=prep_kernel grid=({NLN+512},1,1) block=(256,1,1) lds=17408")
    if upto >= 2:
        import gen2
        a, l = gen2.gen_mid()
        ks.append(("mid_kernel", a)); launches.append(l)
    if upto >= 3:
        import gen3
        a, l = gen3.gen_fin()
        ks.append(("fin_kernel", a)); launches.append(l)
    txt = HEADER + "\n".join(launches) + "\n"
    txt += '.amdgcn_target "amdgcn-amd-amdhsa--gfx950"\n.text\n'
    for n, a in ks:
        txt += a.text()
    txt += '.section .rodata,"a"\n'
    for n, a in ks:
        txt += kernel_desc(n, a.maxv + 1)
        print(n, "vgprs", a.maxv + 1, "sgprs", a.maxs + 1, "lines", len(a.lines))
    open(out, "w").write(txt)


if __name__ == "__main__":
    main()
```

```python
from asmlib import Asm, hexf
from gen import *
import math

NG1 = 224
NKG = 0
LDS_MID = 81920


def epi_setup(a):
    a("v_lshrrev_b32 v5, 5, v1")
    a("v_lshrrev_b32 v6, 1, v2")
    a("v_lshlrev_b32 v3, 7, v6")
    a("v_lshl_add_u32 v3, v5, 3, v3")
    a("s_lshl_b32 s50, s45, 8")
    a("s_lshl_b32 s53, s67, 6")
    a("s_add_u32 s53, s53, s50")
    for qq in range(4):
        a(f"buffer_load_dwordx2 v[{24+2*qq}:{25+2*qq}], v3, s[32:35], s53 offen offset:{16*qq}")
    a("v_lshl_add_u32 v7, v6, 3, v5")
    a("s_lshl_b32 s53, s67, 2")
    a("v_add_u32 v7, s53, v7")
    a("v_and_b32 v9, 15, v1")
    a("v_xor_b32 v7, v7, v9")
    a("v_lshlrev_b32 v7, 4, v7")
    a("v_and_b32 v10, 31, v1")
    a("v_and_b32 v11, 1, v2")
    a("v_lshl_add_u32 v10, v11, 6, v10")
    a("v_lshl_add_u32 v10, v10, 8, v7")
    a("v_add_u32 v10, 49152, v10")
    a("v_xor_b32 v11, 32, v10")
    a("v_add_u32 v7, s53, v2")
    a("v_lshrrev_b32 v13, 4, v1")
    a("v_xor_b32 v12, v9, v13")
    a("v_lshlrev_b32 v12, 4, v12")
    a("v_lshl_add_u32 v13, v7, 4, v13")
    a("v_lshl_add_u32 v12, v13, 8, v12")
    a("v_add_u32 v12, 49152, v12")
    a("v_mul_u32_u24 v13, 3584, v13")
    a("v_lshl_add_u32 v13, v9, 4, v13")
    a("s_mul_i32 s52, s44, 128*3584")
    a("s_add_u32 s52, s52, s50")
    a(f"s_add_u32 s52, s52, {hex(HH)}")
    c0 = -2.0 * math.sqrt(2.0 / math.pi) * math.log2(math.e)
    a(f"s_mov_b32 s54, {hexf(c0 * 0.044715)}")
    a(f"v_mov_b32 v8, {hexf(c0)}")


def gen_gemm1(a):
    a("s_and_b32 s40, s2, 7")
    a("s_lshr_b32 s41, s2, 3")
    a("s_mul_i32 s42, s41, 37")
    a("s_lshr_b32 s42, s42, 8")
    a("s_mul_i32 s43, s42, 7")
    a("s_sub_u32 s43, s41, s43")
    a("s_lshr_b32 s44, s40, 1")
    a("s_lshl_b32 s44, s44, 2")
    a("s_add_u32 s44, s44, s42")
    a("s_and_b32 s45, s40, 1")
    a("s_mul_i32 s45, s45, 7")
    a("s_add_u32 s45, s45, s43")
    a("s_cmp_lt_u32 s46, 4")
    a("s_cbranch_scc1 G1_compute")
    a("s_sub_u32 s46, s46, 4")
    a("v_and_b32 v2, 3, v2")
    a("v_lshrrev_b32 v3, 4, v1")
    a("v_and_b32 v4, 1, v2")
    a("v_lshl_add_u32 v4, v4, 2, v3")
    a("v_and_b32 v5, 7, v1")
    a("v_xor_b32 v4, v4, v5")
    a("v_lshlrev_b32 v4, 4, v4")
    a("v_lshrrev_b32 v5, 3, v1")
    a("v_lshl_add_u32 v10, v5, 10, v4")
    a("v_lshlrev_b32 v4, 2, v3")
    a("v_and_b32 v5, 15, v1")
    a("v_xor_b32 v4, v4, v5")
    a("v_lshlrev_b32 v4, 4, v4")
    a("v_mul_u32_u24 v5, 3584, v3")
    a("v_add_u32 v11, v4, v5")
    a("s_lshl_b32 s48, s44, 17")
    a("s_lshl_b32 s50, s46, 13")
    a("s_add_u32 s48, s48, s50")
    a("s_mul_i32 s49, s46, 14336")
    a("s_lshl_b32 s50, s45, 8")
    a("s_add_u32 s49, s49, s50")
    a("s_lshl_b32 s51, s46, 10")
    a("s_lshl_b32 s60, s42, 1")
    a("s_add_u32 s60, s60, s43")
    a("s_and_b32 s60, s60, 7")
    a("s_mov_b32 s61, s60")

    a(f"s_add_u32 s47, s51, {5*16384}")
    a("s_mov_b32 s65, 0")

    def adv():
        a("s_add_u32 s51, s51, 16384")
        a(f"s_sub_u32 s66, s51, {5*16384}")
        a("s_cmp_ge_u32 s51, s47")
        a("s_cselect_b32 s51, s66, s51")

    def itemA():
        a("s_lshl_b32 s62, s60, 7")
        a("s_add_u32 s62, s62, s48")
        for jj in range(4):
            a(f"s_add_u32 s52, s62, {jj*32768}")
            a(f"s_add_u32 m0, s51, {jj*4096}")
            a("buffer_load_dwordx4 v10, s[24:27], s52 offen lds")
        a("s_add_u32 s60, s60, 1")
        a("s_and_b32 s60, s60, 7")
        adv()

    def itemB():
        a(f"s_mul_i32 s63, s61, {64*3584}")
        a("s_add_u32 s63, s63, s49")
        for jj in range(4):
            a(f"s_add_u32 s52, s63, {jj*16*3584}")
            a(f"s_add_u32 m0, s51, {jj*4096}")
            a("buffer_load_dwordx4 v11, s[28:31], s52 offen lds")
        a("s_add_u32 s61, s61, 1")
        a("s_and_b32 s61, s61, 7")
        adv()

    itemA()
    a("s_branch G1L_pair")
    a("G1L_loop:")
    a("s_waitcnt vmcnt(4)")
    a("s_barrier")
    a("G1L_pair:")
    a.hist = []
    itemB()
    itemA()
    a("s_add_u32 s65, s65, 1")
    a("s_cmp_lt_u32 s65, 7")
    a("s_cbranch_scc1 G1L_loop")
    a("s_waitcnt vmcnt(4)")
    a("s_barrier")
    itemB()
    a("s_waitcnt vmcnt(0)")
    a("s_barrier")
    a("s_mov_b32 s67, 1")
    epi_setup(a)
    a("v_lshlrev_b32 v4, 4, v1")
    a("v_lshl_add_u32 v4, v2, 13, v4")
    a("s_barrier")
    for q in range(8):
        a(f"ds_read_b128 v[{64+4*q}:{67+4*q}], v4 offset:{16384 + 1024*q}")
    a("s_waitcnt lgkmcnt(0)")
    a("s_branch G1_epi")
    a("G1_compute:")
    a.hist = []
    a("v_and_b32 v4, 31, v1")
    a("v_lshrrev_b32 v5, 5, v1")
    a("v_bfe_u32 v6, v1, 1, 3")
    a("v_xor_b32 v6, v6, v5")
    a("v_lshlrev_b32 v6, 4, v6")
    a("v_and_b32 v7, 1, v2")
    a("v_lshl_add_u32 v7, v7, 6, v4")
    a("v_lshl_add_u32 v12, v7, 7, v6")
    for kk in range(1, 4):
        a(f"v_xor_b32 v{12+kk}, {32*kk}, v12")
    a("v_bfe_u32 v4, v1, 2, 2")
    a("v_lshrrev_b32 v6, 5, v1")
    a("v_lshl_add_u32 v6, v6, 3, v4")
    a("v_lshlrev_b32 v6, 8, v6")
    a("v_bfe_u32 v7, v1, 4, 1")
    a("v_lshl_add_u32 v6, v7, 5, v6")
    a("v_and_b32 v7, 3, v1")
    a("v_lshl_add_u32 v6, v7, 3, v6")
    a("v_and_b32 v7, 2, v2")
    a("v_xor_b32 v8, v7, v4")
    a("v_lshl_add_u32 v16, v8, 6, v6")
    a("v_or_b32 v7, 1, v7")
    a("v_xor_b32 v8, v7, v4")
    a("v_lshl_add_u32 v17, v8, 6, v6")
    for r in range(64, 128, 2):
        a(f"v_mov_b64 v[{r}:{r+1}], 0")
    ACC = lambda ni, mi: 64 + 32 * ni + 16 * mi
    XF = lambda s, mi: 32 + 16 * s + 4 * mi
    WF = lambda s, ni: 40 + 16 * s + 4 * ni
    BR = [4, 10, 24, 26, 28, 30, 12, 14]
    a("s_mov_b32 s60, 0")
    a("s_mov_b32 s65, 0")

    def reads(kk):
        s = kk & 1
        for mi in range(2):
            a(f"ds_read_b128 v[{XF(s,mi)}:{XF(s,mi)+3}], v{18+kk} offset:{4096*mi}")
        for ni in range(2):
            for hf in range(2):
                a(f"ds_read_b64_tr_b16 v[{WF(s,ni)+2*hf}:{WF(s,ni)+2*hf+1}], v{22+ni} offset:{(16*kk+4*hf)*256}")

    a("G1C_loop:")
    a("s_add_u32 s61, s60, 16384")
    a(f"s_cmp_eq_u32 s61, {5*16384}")
    a("s_cselect_b32 s61, 0, s61")
    for i in range(4):
        a(f"v_add_u32 v{18+i}, s60, v{12+i}")
    for i in range(2):
        a(f"v_add_u32 v{22+i}, s61, v{16+i}")
    a("s_add_u32 s60, s61, 16384")
    a(f"s_cmp_eq_u32 s60, {5*16384}")
    a("s_cselect_b32 s60, 0, s60")
    a("s_barrier")
    if PROF:
        a("s_cmp_lg_u32 s65, 0")
        a("s_cbranch_scc1 G1C_nostamp")
        stamp_mid(a, 0)
        a("G1C_nostamp:")
    reads(0)
    a("s_add_u32 s65, s65, 1")
    for kk in range(4):
        if kk < 3:
            reads(kk + 1)
        a(f"s_waitcnt lgkmcnt({6 if kk < 3 else 0})")
        s = kk & 1
        for ni in range(2):
            for mi in range(2):
                c = ACC(ni, mi)
                a(f"v_mfma_f32_32x32x16_bf16 v[{c}:{c+15}], v[{WF(s,ni)}:{WF(s,ni)+3}], v[{XF(s,mi)}:{XF(s,mi)+3}], v[{c}:{c+15}]")
    a("s_cmp_lt_u32 s65, 8")
    a("s_cbranch_scc1 G1C_loop")
    stamp_mid(a, 1)
    a("s_mov_b32 s67, 0")
    epi_setup(a)
    a("v_lshlrev_b32 v4, 4, v1")
    a("v_lshl_add_u32 v4, v2, 13, v4")
    for q in range(8):
        a(f"ds_write_b128 v4, v[{96+4*q}:{99+4*q}] offset:{16384 + 1024*q}")
    a("s_waitcnt lgkmcnt(0)")
    a("s_barrier")
    a("G1_epi:")
    a.hist = []
    T0, BU = 32, 48
    a("s_waitcnt vmcnt(0)")
    for qq in range(4):
        for j in range(2):
            src = 24 + 2 * qq + j
            a(f"v_lshlrev_b32 v{BU+4*qq+2*j}, 16, v{src}")
            a(f"v_and_b32 v{BU+4*qq+2*j+1}, s64, v{src}")
    for mi in range(2):
        c = 64 + 16 * mi
        for j in range(8):
            a(f"v_cvt_pk_bf16_f32 v{T0+j}, v{c+2*j}, v{c+2*j+1}")
        for j in range(8):
            a(f"v_lshlrev_b32 v{c+2*j}, 16, v{T0+j}")
            a(f"v_and_b32 v{c+2*j+1}, s64, v{T0+j}")
        for j in range(8):
            a(f"v_pk_add_f32 v[{c+2*j}:{c+2*j+1}], v[{c+2*j}:{c+2*j+1}], v[{BU+2*j}:{BU+2*j+1}]")
        for j in range(8):
            a(f"v_cvt_pk_bf16_f32 v{T0+j}, v{c+2*j}, v{c+2*j+1}")
        for j in range(8):
            a(f"v_lshlrev_b32 v{c+2*j}, 16, v{T0+j}")
            a(f"v_and_b32 v{c+2*j+1}, s64, v{T0+j}")
        for j in range(8):
            a(f"v_pk_mul_f32 v[{T0+2*j}:{T0+2*j+1}], v[{c+2*j}:{c+2*j+1}], v[{c+2*j}:{c+2*j+1}]")
        for j in range(8):
            a(f"v_pk_fma_f32 v[{T0+2*j}:{T0+2*j+1}], v[{T0+2*j}:{T0+2*j+1}], s[54:55], v[8:9] op_sel_hi:[1,0,0]")
        for j in range(8):
            a(f"v_pk_mul_f32 v[{T0+2*j}:{T0+2*j+1}], v[{T0+2*j}:{T0+2*j+1}], v[{c+2*j}:{c+2*j+1}]")
        for r in range(16):
            a(f"v_exp_f32 v{T0+r}, v{T0+r}")
        for j in range(8):
            a(f"v_pk_add_f32 v[{T0+2*j}:{T0+2*j+1}], v[{T0+2*j}:{T0+2*j+1}], 1.0 op_sel_hi:[1,0]")
        for r in range(16):
            a(f"v_rcp_f32 v{T0+r}, v{T0+r}")
        for j in range(8):
            a(f"v_pk_mul_f32 v[{T0+2*j}:{T0+2*j+1}], v[{T0+2*j}:{T0+2*j+1}], v[{c+2*j}:{c+2*j+1}]")
        for j in range(8):
            a(f"v_cvt_pk_bf16_f32 v{c+j}, v{T0+2*j}, v{T0+2*j+1}")
        for p in range(2):
            a(f"v_permlane32_swap_b32 v{c+4*p}, v{c+2+4*p}")
            a(f"v_permlane32_swap_b32 v{c+1+4*p}, v{c+3+4*p}")
        for p in range(2):
            a(f"ds_write_b128 v{10+p}, v[{c+4*p}:{c+3+4*p}] offset:{8192*mi}")
    for j in range(1, 4):
        a(f"v_xor_b32 v{13+j}, {64*j}, v12")
        a(f"s_add_u32 s{56+j}, s52, {4*3584*j}")
    a("s_waitcnt lgkmcnt(0)")
    a("s_barrier")
    a("ds_read_b128 v[32:35], v12")
    for j in range(1, 4):
        a(f"ds_read_b128 v[{32+4*j}:{35+4*j}], v{13+j} offset:{1024*j}")
    for j in range(4):
        a(f"s_waitcnt lgkmcnt({3-j})")
        a(f"buffer_store_dwordx4 v[{32+4*j}:{35+4*j}], v13, s[24:27], s{52 if j == 0 else 56+j} offen sc1")
    endpgm(a, 1)


def gen_kgen(a):
    a("s_lshr_b32 s47, s46, 2")
    a("v_and_b32 v0, 255, v0")
    a("v_and_b32 v2, 3, v2")
    a("s_lshl_b32 s45, s47, 14")
    srd(a, 28, 68, 512 * 128 * 2)
    srd(a, 32, 70, 512 * 128 * 2)
    srd(a, 36, 72, 512 * 128 * 2)
    srd(a, 40, 74, 512 * 128 * 2)
    srd(a, 48, 76, 512 * 2)
    a(f"s_sub_u32 s3, s2, {NG1}")
    a("s_lshl_b32 s3, s3, 1")
    a("s_add_u32 s3, s3, s47")
    a("s_lshl_b32 s8, s3, 8")
    a("s_lshl_b32 s9, s3, 1")
    a("v_mov_b32 v5, 0")
    a("buffer_load_ushort v96, v5, s[48:51], s9 offen")
    a("v_lshlrev_b32 v4, 2, v1")
    a("buffer_load_dword v98, v4, s[36:39], s8 offen")
    a("buffer_load_dword v99, v4, s[40:43], s8 offen")
    a("v_lshrrev_b32 v3, 4, v1")
    a("v_lshlrev_b32 v6, 3, v3")
    a("v_lshl_add_u32 v6, v2, 6, v6")
    for ks in range(2):
        for k in range(4):
            a(f"buffer_load_dwordx2 v[{64+8*ks+2*k}:{65+8*ks+2*k}], v6, s[{28+4*k}:{31+4*k}], s8 offen offset:{32*ks}")
    a("s_mov_b32 s60, 0x3fb8aa3b")
    a("s_mov_b32 s62, 0x32a57060")
    a(f"s_mov_b32 s66, {hexf(math.log(2))}")
    a("v_and_b32 v4, 15, v1")
    a("v_lshlrev_b32 v8, 4, v4")
    a("v_mov_b32 v9, v4")
    a("v_lshlrev_b32 v10, 1, v4")
    a("v_add_u32 v10, 256, v10")
    a("v_bfe_u32 v32, v4, 2, 1")
    a("v_lshlrev_b32 v32, 8, v32")
    a("v_and_b32 v33, 3, v4")
    a("v_lshl_add_u32 v32, v33, 2, v32")
    a("v_add_u32 v32, 512, v32")
    a("v_cmp_gt_u32 vcc, 8, v4")
    a("v_cndmask_b32 v10, v32, v10, vcc")
    a("v_lshrrev_b32 v32, 1, v4")
    a("v_lshlrev_b32 v32, 8, v32")
    a("v_and_b32 v33, 1, v4")
    a("v_lshl_add_u32 v32, v33, 3, v32")
    a("v_add_u32 v11, 1024, v32")
    a("v_mov_b32 v33, 2304")
    a("v_cmp_gt_u32 vcc, 9, v4")
    a("v_cndmask_b32 v11, v33, v11, vcc")
    for r in (8, 9, 10, 11):
        a(f"v_cvt_f32_u32 v{r}, v{r}")
    a("v_mov_b32 v30, v11")
    a("v_mov_b32 v28, v10")
    a(f"v_mul_u32_u24 v32, {TS}, v2")
    a("v_add_u32 v32, s45, v32")
    a("v_lshl_add_u32 v12, v4, 2, v32")
    a("v_lshl_add_u32 v12, v3, 8, v12")
    a("v_mov_b32 v15, 64")
    for t in (1, 2):
        a(f"v_lshrrev_b32 v33, 16, v{9+t}")
        a("v_subrev_u32 v33, 0x4280, v33")
        a(f"v_lshrrev_b32 v34, 23, v{9+t}")
        a("v_subrev_u32 v34, 134, v34")
        a(f"v_lshrrev_b32 v{15+t}, v34, v15")
        a(f"v_mul_u32_u24 v35, v{15+t}, v3")
        a("v_lshl_add_u32 v35, v35, 2, v32")
        a(f"v_lshl_add_u32 v{12+t}, v33, 2, v35")
    a("v_mov_b32 v10, v9")
    for r in range(116, 128, 2):
        a(f"v_mov_b64 v[{r}:{r+1}], 0")
    a("v_lshlrev_b32 v32, 3, v0")
    a("v_sub_u32 v32, 2047, v32")
    for e in range(9):
        a(f"v_subrev_u32 v{18+e}, {e}, v32")
    a("v_max_i32 v26, 0, v26")
    for e in range(9):
        a(f"v_cvt_f32_u32 v{32+e}, v{18+e}")
    for j in range(5):
        a(f"v_cvt_pk_bf16_f32 v{32+2*j}, v{32+2*j}, v{min(33+2*j, 40)}")
    for j in range(5):
        if j < 4:
            a(f"v_lshrrev_b32 v{33+2*j}, 16, v{32+2*j}")
        a(f"v_and_b32 v{32+2*j}, 0xffff, v{32+2*j}")
    for e in range(9):
        a(f"v_subrev_u32 v{32+e}, 0x4280, v{32+e}")
    for e in range(9):
        a(f"v_cmp_gt_u32 vcc, 128, v{18+e}")
        a(f"v_cndmask_b32 v{18+e}, v{32+e}, v{18+e}, vcc")
    for e in range(9):
        a(f"v_lshl_add_u32 v{18+e}, v{18+e}, 2, s45")
    a("s_waitcnt vmcnt(10)")
    a("v_lshlrev_b32 v96, 16, v96")
    a("v_mul_f32 v4, s60, v96")
    a("v_fma_f32 v5, v96, s60, -v4")
    a("v_fma_f32 v5, v96, s62, v5")
    a("v_exp_f32 v4, v4")
    a("v_mul_f32 v5, s66, v5")
    a("v_fma_f32 v96, v4, v5, v4")
    a("v_cvt_pk_bf16_f32 v96, v96, v96")
    a("v_and_b32 v96, s64, v96")
    a("s_waitcnt vmcnt(8)")
    a("v_lshlrev_b32 v4, 16, v98")
    a("v_and_b32 v5, s64, v98")
    a("v_lshlrev_b32 v6, 16, v99")
    a("v_and_b32 v7, s64, v99")
    a("v_add_f32 v4, |v4|, |v5|")
    a("v_add_f32 v6, |v6|, |v7|")
    a("v_add_f32 v98, v4, v6")
    reduce_sum(a, [98], [99])
    a("v_mul_f32 v98, v98, v96")
    a("v_add_f32 v98, v98, v98")
    a("v_lshrrev_b32 v98, 23, v98")
    a("v_sub_u32 v98, 268, v98")
    a("v_min_u32 v98, 240, v98")
    a("v_sub_u32 v99, 244, v98")
    a("v_lshlrev_b32 v99, 23, v99")
    a("v_lshlrev_b32 v98, 23, v98")
    a("v_mul_f32 v98, v98, v96")
    a("v_add_f32 v98, v98, v98")
    a("v_mul_f32 v4, 0xbfb8aa3b, v96")
    a("v_mul_f32 v5, 0.15915494, v96")

    def cexp(preg):
        pp = preg & ~1
        sel = "op_sel_hi:[1,0]" if preg == pp else "op_sel:[0,1] op_sel_hi:[1,1]"
        for u in range(4):
            a(f"v_pk_mul_f32 v[{48+2*u}:{49+2*u}], v[{32+2*u}:{33+2*u}], v[{pp}:{pp+1}] {sel}")
        for u in range(4):
            a(f"v_fract_f32 v{49+2*u}, v{49+2*u}")
        for u in range(4):
            a(f"v_exp_f32 v{48+2*u}, v{48+2*u}")
            a(f"v_cos_f32 v{56+2*u}, v{49+2*u}")
            a(f"v_sin_f32 v{57+2*u}, v{49+2*u}")
        for u in range(4):
            a(f"v_pk_mul_f32 v[{56+2*u}:{57+2*u}], v[{56+2*u}:{57+2*u}], v[{48+2*u}:{49+2*u}] op_sel_hi:[1,0]")

    for ks in range(2):
        R = 64 + 8 * ks
        a(f"s_waitcnt vmcnt({4*(1-ks)})")
        for j in range(2):
            a(f"v_lshlrev_b32 v{48+2*j}, 16, v{R+j}")
            a(f"v_and_b32 v{49+2*j}, s64, v{R+j}")
        for j in range(2):
            a(f"v_pk_mul_f32 v[{52+2*j}:{53+2*j}], v[{48+2*j}:{49+2*j}], s[60:61] op_sel_hi:[1,0]")
        for j in range(2):
            a(f"v_pk_fma_f32 v[{56+2*j}:{57+2*j}], v[{48+2*j}:{49+2*j}], s[60:61], v[{52+2*j}:{53+2*j}] op_sel_hi:[1,0,1] neg_lo:[0,0,1] neg_hi:[0,0,1]")
        for j in range(2):
            a(f"v_pk_fma_f32 v[{56+2*j}:{57+2*j}], v[{48+2*j}:{49+2*j}], s[62:63], v[{56+2*j}:{57+2*j}] op_sel_hi:[1,0,1]")
        for u in range(4):
            a(f"v_exp_f32 v{52+u}, v{52+u}")
        for j in range(2):
            a(f"v_pk_mul_f32 v[{56+2*j}:{57+2*j}], v[{56+2*j}:{57+2*j}], s[66:67] op_sel_hi:[1,0]")
        for j in range(2):
            a(f"v_pk_fma_f32 v[{52+2*j}:{53+2*j}], v[{52+2*j}:{53+2*j}], v[{56+2*j}:{57+2*j}], v[{52+2*j}:{53+2*j}]")
        for j in range(2):
            a(f"v_cvt_pk_bf16_f32 v{48+j}, v{52+2*j}, v{53+2*j}")
        for j in range(2):
            a(f"v_lshlrev_b32 v{32+4*j}, 16, v{48+j}")
            a(f"v_and_b32 v{34+4*j}, s64, v{48+j}")
            a(f"v_lshlrev_b32 v{33+4*j}, 16, v{R+2+j}")
            a(f"v_and_b32 v{35+4*j}, s64, v{R+2+j}")
            a(f"v_lshlrev_b32 v{40+4*j}, 16, v{R+4+j}")
            a(f"v_and_b32 v{42+4*j}, s64, v{R+4+j}")
            a(f"v_lshlrev_b32 v{41+4*j}, 16, v{R+6+j}")
            a(f"v_and_b32 v{43+4*j}, s64, v{R+6+j}")
        for u in range(4):
            a(f"v_pk_mul_f32 v[{32+2*u}:{33+2*u}], v[{32+2*u}:{33+2*u}], v[4:5]")
            a(f"v_pk_mul_f32 v[{40+2*u}:{41+2*u}], v[{40+2*u}:{41+2*u}], v[98:99] op_sel_hi:[1,0]")
        cexp(8)
        for u in range(4):
            a(f"v_pk_mul_f32 v[{100+2*u}:{101+2*u}], v[{56+2*u}:{57+2*u}], v[{40+2*u}:{41+2*u}] op_sel_hi:[1,0] neg_hi:[0,1]")
        for u in range(4):
            a(f"v_fma_f32 v{100+2*u}, -v{41+2*u}, v{57+2*u}, v{100+2*u}")
            a(f"v_fma_f32 v{101+2*u}, -v{41+2*u}, v{56+2*u}, v{101+2*u}")
        for u in range(4):
            a(f"v_cvt_pk_f16_f32 v{108+u}, v{100+2*u}, v{101+2*u}")
        for t in range(3):
            cexp((10, 28, 30)[t])
            for u in range(4):
                a(f"v_cvt_pk_f16_f32 v{112+u}, v{56+2*u}, v{57+2*u}")
            acc = f"v[{116+4*t}:{119+4*t}]"
            a(f"v_mfma_f32_16x16x32_f16 {acc}, v[108:111], v[112:115], {acc}")
    a("v_lshl_add_u32 v4, v0, 2, s45")
    a(f"s_mul_i32 s8, s3, {KRS}")
    a(f"s_add_u32 s12, s8, {hex(KR2)}")
    a(f"s_add_u32 s8, s8, {hex(KR)}")
    a("v_lshlrev_b32 v5, 4, v0")
    a("s_lshl_b32 s9, s3, 2")
    a(f"s_add_u32 s9, s9, {hex(KINV)}")
    for t in range(3):
        for r in range(4):
            a(f"ds_write_b32 v{12+t}, v{116+4*t+r}")
            if r < 3:
                a(f"v_add_u32 v{12+t}, v{12+t}, v{15+t}")
    a("s_waitcnt lgkmcnt(0)")
    a("s_barrier")
    for k in range(3):
        for w in range(4):
            a(f"ds_read_b32 v{32+4*k+w}, v4 offset:{TS*w + 1024*k}")
    a("s_waitcnt lgkmcnt(0)")
    for k in range(3):
        a(f"v_pk_add_f32 v[{32+4*k}:{33+4*k}], v[{32+4*k}:{33+4*k}], v[{34+4*k}:{35+4*k}]")
    for k in range(3):
        a(f"v_add_f32 v{32+4*k}, v{32+4*k}, v{33+4*k}")
    for k in range(3):
        a(f"ds_write_b32 v4, v{32+4*k} offset:{4*TS + 1024*k}")
    a("s_waitcnt lgkmcnt(0)")
    a("s_barrier")
    for e in range(9):
        a(f"ds_read_b32 v{32+e}, v{18+e} offset:{4*TS}")
    a("v_cmp_gt_u32 vcc, 255, v0")
    a("v_mov_b64 v[52:53], 0")
    a("v_mov_b64 v[54:55], 0")
    a("s_waitcnt lgkmcnt(0)")
    a("v_cndmask_b32 v40, 0, v40, vcc")
    for j in range(4):
        a(f"v_cvt_pk_f16_f32 v{44+j}, v{32+2*j}, v{33+2*j}")
        a(f"v_cvt_pk_f16_f32 v{48+j}, v{33+2*j}, v{34+2*j}")
    a("buffer_store_dwordx4 v[44:47], v5, s[24:27], s8 offen sc1")
    a("buffer_store_dwordx4 v[48:51], v5, s[24:27], s12 offen sc1")
    a("v_add_u32 v5, 4096, v5")
    a("v_cmp_gt_u32 vcc, 4, v0")
    a("s_and_saveexec_b64 s[10:11], vcc")
    a("s_cbranch_execz P_done2")
    a("buffer_store_dwordx4 v[52:55], v5, s[24:27], s8 offen")
    a("buffer_store_dwordx4 v[52:55], v5, s[24:27], s12 offen")
    a("buffer_store_dword v99, v52, s[24:27], s9 offen")
    a("P_done2:")
    if PROF:
        a("s_mov_b64 exec, -1")
        a("v_lshl_add_u32 v0, s47, 8, v0")
    endpgm(a, 1)


def gen_mid():
    a = Asm()
    kernel_head(a, "mid_kernel")
    a(f"s_cmp_ge_u32 s2, {NG1 + NKG}")
    a("s_cbranch_scc1 M_done")
    stamp_start(a)
    a("s_load_dwordx2 s[4:5], s[0:1], 112")
    a("s_load_dwordx4 s[8:11], s[0:1], 64")
    a("v_and_b32 v1, 63, v0")
    a("v_lshrrev_b32 v2, 6, v0")
    a("s_mov_b32 s64, 0xffff0000")
    a("v_readfirstlane_b32 s46, v2")
    a("s_waitcnt lgkmcnt(0)")
    srd(a, 24, 4, WS_USED)
    srd(a, 28, 8, 512 * 1792 * 2)
    srd(a, 32, 10, 1792 * 2)
    if os.environ.get("ROLE") == "conv":
        a("s_endpgm")
    gen_gemm1(a)
    a("M_done:")
    a("s_endpgm")
    return a, f"; @launch kernel=mid_kernel grid=({NG1+NKG},1,1) block=(512,1,1) lds={LDS_MID}"
```

```python
from asmlib import Asm, hexf
from gen import *
import math

NCV = 256
NG2 = 256
LDS_FIN = 81920
NKS = 14
HBS = 40192
XMO = 33792


def gen_conv(a):
    a("s_setprio 2")
    a("s_lshr_b32 s47, s46, 2")
    a("s_and_b32 s46, s46, 3")
    a("v_and_b32 v0, 255, v0")
    a("v_and_b32 v2, 3, v2")
    a("s_lshl_b32 s3, s2, 1")
    a("s_add_u32 s3, s3, s47")
    a(f"s_mul_i32 s45, s47, {HBS}")
    a("v_sub_u32 v3, 2079, v1")
    a("v_and_b32 v4, 1, v3")
    a("v_and_b32 v3, 0xfffffffe, v3")
    a("v_lshlrev_b32 v3, 1, v3")
    a(f"s_mov_b32 s40, {hex(KR2 - KR)}")
    a("v_mul_lo_u32 v4, v4, s40")
    a("v_add_u32 v3, v3, v4")
    a(f"s_mul_i32 s40, s3, {KRS}")
    a(f"s_add_u32 s40, s40, {hex(KR)}")
    a("s_lshl_b32 s41, s46, 7")
    a("s_sub_u32 s40, s40, s41")
    a("s_lshl_b32 s41, s46, 10")
    a("s_add_u32 s41, s41, s45")
    a("v_lshlrev_b32 v4, 4, v0")
    a("s_lshl_b32 s43, s3, 12")
    a(f"s_add_u32 s44, s43, {hex(XT)}")
    a("s_waitcnt lgkmcnt(0)")
    srd(a, 24, 4, WS_USED)
    srd(a, 36, 14, 512 * 2)
    srd(a, 56, 16, 256)
    a("buffer_load_dwordx4 v[8:11], v4, s[24:27], s44 offen")
    a("v_mov_b32 v5, 0")
    a("s_lshl_b32 s44, s3, 1")
    a("buffer_load_ushort v20, v5, s[36:39], s44 offen")
    a("s_lshl_b32 s44, s3, 2")
    a(f"s_add_u32 s44, s44, {hex(KINV)}")
    a("buffer_load_dword v22, v5, s[24:27], s44 offen")
    for jj in range(8):
        a(f"s_sub_u32 s42, s40, {512*jj}")
        a(f"s_add_u32 m0, s41, {4096*jj}")
        a("buffer_load_dwordx4 v3, s[24:27], s42 offen lds")
    a("s_cmp_lg_u32 s46, 0")
    a("s_cbranch_scc1 C_skip33")
    a(f"s_sub_u32 s42, s40, {512*8}")
    a(f"s_add_u32 m0, s41, {4096*8}")
    a("s_nop 0")
    a("buffer_load_dwordx4 v3, s[24:27], s42 offen lds")
    a("C_skip33:")
    a.hist = []
    a("v_mov_b64 v[12:13], 0")
    a("v_mov_b64 v[14:15], 0")
    a(f"v_min_u32 v5, {79*16}, v4")
    a("v_add_u32 v5, s45, v5")
    a(f"ds_write_b128 v5, v[12:15] offset:{XMO}")
    a("v_lshrrev_b32 v5, 2, v0")
    a("v_mul_u32_u24 v5, 80, v5")
    a("v_and_b32 v6, 3, v0")
    a("v_lshl_add_u32 v5, v6, 4, v5")
    a("v_add_u32 v5, s45, v5")
    a("v_and_b32 v6, 15, v1")
    a("v_lshrrev_b32 v7, 4, v1")
    a("v_lshlrev_b32 v16, 4, v6")
    a("v_lshlrev_b32 v17, 7, v7")
    a("v_sub_u32 v16, v16, v17")
    a("v_lshl_add_u32 v16, v2, 9, v16")
    a("v_add_u32 v16, s45, v16")
    a("v_add_u32 v16, 512, v16")
    a("v_add_u32 v17, 4, v6")
    a("v_sub_u32 v17, v17, v2")
    a("v_mul_u32_u24 v17, 80, v17")
    a("v_lshl_add_u32 v17, v7, 4, v17")
    a("v_add_u32 v17, s45, v17")
    for r in range(96, 128, 2):
        a(f"v_mov_b64 v[{r}:{r+1}], 0")
    a("s_waitcnt vmcnt(9)")
    a(f"ds_write_b128 v5, v[8:11] offset:{XMO + 16*80}")
    a("s_waitcnt vmcnt(0) lgkmcnt(0)")
    a("s_barrier")
    stamp_mid(a, 0)
    AF = lambda k, hf: 24 + 8 * k + 4 * hf
    BF = lambda s, t: 56 + 16 * s + 4 * t
    ACC = lambda hf, t: 96 + 16 * hf + 4 * t

    def rdA(it, k):
        for hf in range(2):
            a(f"ds_read_b128 v[{AF(k,hf)}:{AF(k,hf)+3}], v16 offset:{2048*it + 8192*k + 256*hf}")

    def rdB(it):
        for t in range(4):
            a(f"ds_read_b128 v[{BF(it&1,t)}:{BF(it&1,t)+3}], v17 offset:{XMO + (12-4*it)*80 + 1280*t}")

    rdB(0)
    for k in range(4):
        rdA(0, k)
    for it in range(4):
        last = it == 3
        if it == 0:
            a("s_waitcnt lgkmcnt(8)")
        if not last:
            rdB(it + 1)
        for k in range(4):
            a(f"s_waitcnt lgkmcnt({10 if not last else 2*(3-k)})")
            for t in range(k, 4):
                for hf in range(2):
                    c = ACC(hf, t)
                    a(f"v_mfma_f32_16x16x32_f16 v[{c}:{c+3}], v[{AF(k,hf)}:{AF(k,hf)+3}], v[{BF(it&1,t-k)}:{BF(it&1,t-k)+3}], v[{c}:{c+3}]")
            if not last:
                rdA(it + 1, k)
    a("v_lshlrev_b32 v4, 4, v1")
    a("v_add_u32 v4, s45, v4")
    a("v_lshl_add_u32 v5, v2, 11, v4")
    a("v_lshl_add_u32 v4, v2, 13, v4")
    a("v_and_b32 v8, 1, v2")
    a("v_lshl_add_u32 v8, v8, 5, v6")
    a("v_lshrrev_b32 v9, 1, v2")
    a("v_lshlrev_b32 v9, 5, v9")
    a("v_lshl_add_u32 v9, v7, 3, v9")
    a("v_mul_u32_u24 v10, 80, v8")
    a("v_add_u32 v10, v10, v9")
    a("v_add_u32 v10, s45, v10")
    a("v_lshl_add_u32 v11, v8, 6, v9")
    a("v_add_u32 v11, s45, v11")
    a(f"s_add_u32 s43, s43, {hex(ST)}")
    a("v_lshlrev_b32 v20, 16, v20")
    a(f"v_mul_f32 v20, {hexf(1/1024)}, v20")
    a("s_barrier")
    stamp_mid(a, 1)
    for q in range(8):
        a(f"ds_write_b128 v4, v[{96+4*q}:{99+4*q}] offset:{1024*q}")
    for j in range(2):
        a(f"ds_read_b64 v[{12+2*j}:{13+2*j}], v10 offset:{XMO + 16*80 + 1280*j}")
    a("s_waitcnt lgkmcnt(0)")
    a("s_barrier")
    for j in range(2):
        for w in range(4):
            a(f"ds_read_b128 v[{24+16*j+4*w}:{27+16*j+4*w}], v5 offset:{8192*w + 1024*j}")
    for j in range(2):
        b = 64 + 16 * j
        for e2 in range(2):
            a(f"v_cvt_f32_f16 v{b+4+2*e2}, v{12+2*j+e2}")
            a(f"v_lshrrev_b32 v{b+5+2*e2}, 16, v{12+2*j+e2}")
        for e2 in range(2):
            a(f"v_cvt_f32_f16 v{b+5+2*e2}, v{b+5+2*e2}")
        for e2 in range(2):
            a(f"v_pk_mul_f32 v[{b+4+2*e2}:{b+5+2*e2}], v[{b+4+2*e2}:{b+5+2*e2}], v[20:21] op_sel_hi:[1,0]")
        for e2 in range(2):
            a(f"v_cvt_pk_bf16_f32 v{b+10+e2}, v{b+4+2*e2}, v{b+5+2*e2}")
        for e2 in range(2):
            a(f"v_lshlrev_b32 v{b+4+2*e2}, 16, v{b+10+e2}")
            a(f"v_and_b32 v{b+5+2*e2}, s64, v{b+10+e2}")
    a("s_waitcnt lgkmcnt(0)")
    for j in range(2):
        b = 64 + 16 * j
        p = 24 + 16 * j
        for e in range(0, 4, 2):
            a(f"v_pk_add_f32 v[{p+e}:{p+e+1}], v[{p+e}:{p+e+1}], v[{p+4+e}:{p+5+e}]")
            a(f"v_pk_add_f32 v[{p+8+e}:{p+9+e}], v[{p+8+e}:{p+9+e}], v[{p+12+e}:{p+13+e}]")
        for e in range(0, 4, 2):
            a(f"v_pk_add_f32 v[{b+e}:{b+e+1}], v[{p+e}:{p+e+1}], v[{p+8+e}:{p+9+e}]")
        for e in range(0, 4, 2):
            a(f"v_pk_mul_f32 v[{b+e}:{b+e+1}], v[{b+e}:{b+e+1}], v[22:23] op_sel_hi:[1,0]")
        for e2 in range(2):
            a(f"v_cvt_pk_bf16_f32 v{b+8+e2}, v{b+2*e2}, v{b+2*e2+1}")
        for e2 in range(2):
            a(f"v_lshlrev_b32 v{b+2*e2}, 16, v{b+8+e2}")
            a(f"v_and_b32 v{b+2*e2+1}, s64, v{b+8+e2}")
        for e in range(0, 4, 2):
            a(f"v_pk_add_f32 v[{b+e}:{b+e+1}], v[{b+e}:{b+e+1}], v[{b+4+e}:{b+5+e}]")
        for e2 in range(2):
            a(f"v_cvt_pk_bf16_f32 v{b+8+e2}, v{b+2*e2}, v{b+2*e2+1}")
    a("v_lshlrev_b32 v4, 4, v0")
    a("v_add_u32 v5, s45, v4")
    a("s_barrier")
    for j in range(2):
        a(f"ds_write_b64 v11, v[{72+16*j}:{73+16*j}] offset:{1024*j}")
    a("s_waitcnt lgkmcnt(0)")
    a("s_barrier")
    a("ds_read_b128 v[24:27], v5")
    a("s_waitcnt lgkmcnt(0)")
    a("buffer_store_dwordx4 v[24:27], v4, s[24:27], s43 offen sc1")
    a("s_waitcnt vmcnt(0)")
    a("s_barrier")
    a("s_or_b32 s40, s46, s47")
    a("s_cmp_lg_u32 s40, 0")
    a("s_cbranch_scc1 C_end")
    a("v_mov_b32 v24, 1")
    a("v_mov_b32 v25, 0")
    a("s_mov_b64 exec, 1")
    a("buffer_atomic_add v24, v25, s[56:59], 0 offen sc1")
    a("s_mov_b64 exec, -1")
    a("C_end:")
    if PROF:
        a("v_lshl_add_u32 v0, s47, 8, v0")
    endpgm(a, 2)


def gen_fin():
    a = Asm()
    kernel_head(a, "fin_kernel")
    a(f"s_cmp_ge_u32 s2, {NCV + NG2}")
    a("s_cbranch_scc1 F_done")
    stamp_start(a)
    a("s_load_dwordx2 s[4:5], s[0:1], 112")
    a("s_load_dwordx4 s[8:11], s[0:1], 80")
    a("s_load_dwordx2 s[6:7], s[0:1], 0")
    a("s_load_dwordx2 s[12:13], s[0:1], 96")
    a("s_load_dwordx2 s[14:15], s[0:1], 48")
    a("s_load_dwordx2 s[16:17], s[0:1], 104")
    a("v_and_b32 v1, 63, v0")
    a("v_lshrrev_b32 v2, 6, v0")
    a("s_mov_b32 s64, 0xffff0000")
    a("v_readfirstlane_b32 s46, v2")
    a(f"s_cmp_ge_u32 s2, {NCV}")
    a("s_cbranch_scc1 F_gemm")
    gen_conv(a)
    a("F_gemm:")
    a.hist = []
    a("s_and_b32 s40, s2, 7")
    a(f"s_sub_u32 s41, s2, {NCV}")
    a("s_lshr_b32 s41, s41, 3")
    a("s_lshr_b32 s44, s41, 3")
    a("s_lshl_b32 s40, s40, 2")
    a("s_add_u32 s44, s44, s40")
    a("s_and_b32 s45, s41, 7")
    a("s_cmp_lt_u32 s46, 4")
    a("s_cbranch_scc1 F_compute")
    a("s_sub_u32 s46, s46, 4")
    a("v_and_b32 v2, 3, v2")
    a("v_lshrrev_b32 v3, 4, v1")
    a("v_lshl_add_u32 v4, v2, 2, v3")
    a("v_and_b32 v5, 15, v1")
    a("v_xor_b32 v4, v4, v5")
    a("v_lshlrev_b32 v4, 4, v4")
    a("v_mul_u32_u24 v5, 3584, v3")
    a("v_add_u32 v10, v4, v5")
    a("v_and_b32 v4, 1, v3")
    a("v_lshlrev_b32 v4, 2, v4")
    a("v_and_b32 v5, 7, v1")
    a("v_xor_b32 v4, v4, v5")
    a("v_lshlrev_b32 v4, 4, v4")
    a("v_lshrrev_b32 v5, 3, v1")
    a("v_lshl_add_u32 v11, v5, 10, v4")
    a("s_lshl_b32 s48, s44, 6")
    a("s_lshl_b32 s50, s46, 2")
    a("s_add_u32 s48, s48, s50")
    a("s_mul_i32 s48, s48, 3584")
    a(f"s_add_u32 s48, s48, {hex(HH)}")
    a("s_lshl_b32 s49, s46, 13")
    a("s_lshl_b32 s50, s45, 7")
    a("s_add_u32 s49, s49, s50")
    a("s_lshl_b32 s51, s46, 10")
    a(f"s_add_u32 s47, s51, {5*16384}")
    a("s_lshr_b32 s60, s41, 3")
    a("s_lshl_b32 s60, s60, 1")
    a("s_add_u32 s60, s60, s45")
    a("s_lshl_b32 s60, s60, 1")
    a("s_sub_u32 s61, s60, 14")
    a("s_cmp_ge_u32 s60, 14")
    a("s_cselect_b32 s60, s61, s60")
    a("s_mov_b32 s61, s60")
    a("s_mov_b32 s65, 0")
    a("s_waitcnt lgkmcnt(0)")
    srd(a, 24, 4, WS_USED)
    srd(a, 28, 8, 1792 * 512 * 2)

    def adv():
        a("s_add_u32 s51, s51, 16384")
        a(f"s_sub_u32 s66, s51, {5*16384}")
        a("s_cmp_ge_u32 s51, s47")
        a("s_cselect_b32 s51, s66, s51")

    def itemA():
        a("s_lshl_b32 s62, s60, 8")
        a("s_add_u32 s62, s62, s48")
        for jj in range(4):
            a(f"s_add_u32 s52, s62, {jj*16*3584}")
            a(f"s_add_u32 m0, s51, {jj*4096}")
            a("buffer_load_dwordx4 v10, s[24:27], s52 offen lds")
        a("s_add_u32 s60, s60, 1")
        a("s_cmp_eq_u32 s60, 14")
        a("s_cselect_b32 s60, 0, s60")
        adv()

    def itemB():
        a("s_lshl_b32 s63, s61, 17")
        a("s_add_u32 s63, s63, s49")
        for jj in range(4):
            a(f"s_add_u32 s52, s63, {(jj*32)*1024}")
            a(f"s_add_u32 m0, s51, {jj*4096}")
            a("buffer_load_dwordx4 v11, s[28:31], s52 offen lds")
        a("s_add_u32 s61, s61, 1")
        a("s_cmp_eq_u32 s61, 14")
        a("s_cselect_b32 s61, 0, s61")
        adv()

    itemA()
    a("s_branch FL_pair")
    a("FL_loop:")
    a("s_waitcnt vmcnt(4)")
    a("s_barrier")
    a("FL_pair:")
    a.hist = []
    itemB()
    itemA()
    a("s_add_u32 s65, s65, 1")
    a(f"s_cmp_lt_u32 s65, {NKS-1}")
    a("s_cbranch_scc1 FL_loop")
    a("s_waitcnt vmcnt(4)")
    a("s_barrier")
    itemB()
    a("s_waitcnt vmcnt(0)")
    a("s_barrier")
    endpgm(a, 2)
    a("F_compute:")
    a.hist = []
    a("v_and_b32 v4, 15, v0")
    a("v_lshrrev_b32 v5, 4, v0")
    a("v_lshlrev_b32 v6, 3, v4")
    a("v_lshl_add_u32 v18, v5, 12, v6")
    a("s_lshl_b32 s53, s44, 16")
    a("s_lshl_b32 s50, s45, 7")
    a("s_add_u32 s53, s53, s50")
    a("v_lshlrev_b32 v7, 3, v5")
    a("v_lshl_add_u32 v19, v4, 14, v7")
    a("s_lshl_b32 s54, s45, 18")
    a("s_lshl_b32 s55, s44, 7")
    a("s_add_u32 s54, s54, s55")
    a(f"s_add_u32 s54, s54, {hex(ST)}")
    a("s_waitcnt lgkmcnt(0)")
    srd(a, 24, 4, WS_USED)
    srd(a, 32, 10, 512 * 2)
    srd(a, 36, 6, 2048 * 512 * 2)
    srd(a, 56, 12, 2048 * 512 * 2)
    srd(a, 68, 16, 256)
    for jj in range(4):
        a(f"buffer_load_dwordx2 v[{24+2*jj}:{25+2*jj}], v18, s[36:39], s53 offen offset:{1024*jj}")
    a("buffer_load_dwordx2 v[10:11], v6, s[32:35], s50 offen")
    a("v_and_b32 v4, 31, v1")
    a("v_lshrrev_b32 v5, 5, v1")
    a("v_lshl_add_u32 v6, v2, 2, v5")
    a("v_and_b32 v7, 15, v1")
    a("v_xor_b32 v8, v6, v7")
    a("v_lshlrev_b32 v8, 4, v8")
    a("v_lshl_add_u32 v12, v4, 8, v8")
    a("v_xor_b32 v13, 32, v12")
    a("v_bfe_u32 v4, v1, 2, 2")
    a("v_lshl_add_u32 v6, v5, 3, v4")
    a("v_lshl_add_u32 v6, v2, 5, v6")
    a("v_lshlrev_b32 v6, 7, v6")
    a("v_bfe_u32 v7, v1, 4, 1")
    a("v_lshl_add_u32 v6, v7, 5, v6")
    a("v_and_b32 v7, 3, v1")
    a("v_lshl_add_u32 v6, v7, 3, v6")
    a("v_lshrrev_b32 v7, 1, v4")
    a("v_lshl_add_u32 v14, v7, 6, v6")
    a("v_xor_b32 v15, 64, v14")
    for r in range(64, 128, 2):
        a(f"v_mov_b64 v[{r}:{r+1}], 0")
    PW = 16 * 1056
    a("v_and_b32 v4, 31, v1")
    a("v_mul_u32_u24 v6, 528, v5")
    a("v_lshl_add_u32 v4, v4, 4, v6")
    a(f"v_mul_u32_u24 v6, {PW}, v2")
    a("v_add_u32 v16, v4, v6")
    a("v_bfe_u32 v5, v0, 3, 1")
    a("v_lshrrev_b32 v6, 7, v0")
    a("v_lshl_add_u32 v5, v5, 1, v6")
    a("v_bfe_u32 v6, v0, 1, 2")
    a("v_lshl_add_u32 v5, v5, 2, v6")
    a("v_mul_u32_u24 v5, 1056, v5")
    a("v_and_b32 v6, 1, v0")
    a("v_mul_u32_u24 v6, 528, v6")
    a("v_add_u32 v5, v5, v6")
    a("v_bfe_u32 v6, v0, 4, 3")
    a("v_lshl_add_u32 v17, v6, 6, v5")
    a("s_mov_b32 s60, 0")
    a("s_mov_b32 s65, 0")
    ACC = lambda di, mi: 64 + 32 * di + 16 * mi
    XF = lambda s, mi: 32 + 16 * s + 4 * mi
    WF = lambda s, di: 40 + 16 * s + 4 * di
    a("FC_loop:")
    a("s_add_u32 s61, s60, 16384")
    a(f"s_cmp_eq_u32 s61, {5*16384}")
    a("s_cselect_b32 s61, 0, s61")
    for i in range(2):
        a(f"v_add_u32 v{20+i}, s60, v{12+i}")
        a(f"v_add_u32 v{22+i}, s61, v{14+i}")
    a("s_add_u32 s60, s61, 16384")
    a(f"s_cmp_eq_u32 s60, {5*16384}")
    a("s_cselect_b32 s60, 0, s60")
    a("s_barrier")
    if PROF:
        a("s_cmp_lg_u32 s65, 0")
        a("s_cbranch_scc1 FC_nostamp")
        stamp_mid(a, 0)
        a("FC_nostamp:")
    for u in range(2):
        for mi in range(2):
            a(f"ds_read_b128 v[{XF(u,mi)}:{XF(u,mi)+3}], v{20+u} offset:{8192*mi}")
        for di in range(2):
            for hf in range(2):
                a(f"ds_read_b64_tr_b16 v[{WF(u,di)+2*hf}:{WF(u,di)+2*hf+1}], v{22+di} offset:{(16*u+4*hf)*128}")
    a("s_add_u32 s65, s65, 1")
    for u in range(2):
        a(f"s_waitcnt lgkmcnt({6*(1-u)})")
        for di in range(2):
            for mi in range(2):
                c = ACC(di, mi)
                a(f"v_mfma_f32_32x32x16_bf16 v[{c}:{c+15}], v[{WF(u,di)}:{WF(u,di)+3}], v[{XF(u,mi)}:{XF(u,mi)+3}], v[{c}:{c+15}]")
    a(f"s_cmp_lt_u32 s65, {NKS}")
    a("s_cbranch_scc1 FC_loop")
    stamp_mid(a, 1)
    a("v_mov_b32 v4, 0")
    a("FC_poll:")
    a("buffer_load_dword v5, v4, s[68:71], 0 offen sc1")
    a("s_waitcnt vmcnt(0)")
    a("v_readfirstlane_b32 s60, v5")
    a(f"s_cmp_ge_u32 s60, {NCV}")
    a("s_cbranch_scc1 FC_go")
    a("s_sleep 8")
    a("s_branch FC_poll")
    a("FC_go:")
    a("s_add_u32 s55, s54, 8192")
    a("v_add_u32 v7, 4096, v19")
    a("buffer_load_dwordx2 v[40:41], v19, s[24:27], s54 offen sc1")
    a("buffer_load_dwordx2 v[42:43], v7, s[24:27], s54 offen sc1")
    a("buffer_load_dwordx2 v[44:45], v19, s[24:27], s55 offen sc1")
    a("buffer_load_dwordx2 v[46:47], v7, s[24:27], s55 offen sc1")
    a("s_nop 15")
    a("s_nop 15")
    a("s_nop 15")
    a("s_barrier")
    a.hist = []
    for q in range(16):
        a(f"ds_write_b128 v16, v[{64+4*q}:{67+4*q}] offset:{1056*q}")
    for p in range(2):
        a(f"v_lshlrev_b32 v{20+2*p}, 16, v{10+p}")
        a(f"v_and_b32 v{21+2*p}, s64, v{10+p}")
    a("s_waitcnt lgkmcnt(0)")
    a("s_barrier")
    for w in range(4):
        for jj in range(4):
            a(f"ds_read_b128 v[{64+16*w+4*jj}:{67+16*w+4*jj}], v17 offset:{PW*w + 16*jj}")
    a("s_waitcnt vmcnt(0)")
    X = lambda jj, dd: 32 + 4 * jj + dd
    S = lambda jj, dd: 48 + 4 * jj + dd
    for dd in range(4):
        for p in range(2):
            a(f"v_lshlrev_b32 v{S(2*p,dd)}, 16, v{40+2*dd+p}")
            a(f"v_and_b32 v{S(2*p+1,dd)}, s64, v{40+2*dd+p}")
    for jj in range(4):
        for p in range(2):
            a(f"v_lshlrev_b32 v{X(jj,2*p)}, 16, v{24+2*jj+p}")
            a(f"v_and_b32 v{X(jj,2*p+1)}, s64, v{24+2*jj+p}")
    a("s_waitcnt lgkmcnt(8)")
    for j in range(8):
        a(f"v_pk_add_f32 v[{64+2*j}:{65+2*j}], v[{64+2*j}:{65+2*j}], v[{80+2*j}:{81+2*j}]")
    a("s_waitcnt lgkmcnt(0)")
    for j in range(8):
        a(f"v_pk_add_f32 v[{96+2*j}:{97+2*j}], v[{96+2*j}:{97+2*j}], v[{112+2*j}:{113+2*j}]")
    for j in range(8):
        a(f"v_pk_add_f32 v[{64+2*j}:{65+2*j}], v[{64+2*j}:{65+2*j}], v[{96+2*j}:{97+2*j}]")
    O, T = 64, 80

    def rnd(base):
        for j in range(8):
            a(f"v_cvt_pk_bf16_f32 v{T+j}, v{base+2*j}, v{base+2*j+1}")
        for j in range(8):
            a(f"v_lshlrev_b32 v{base+2*j}, 16, v{T+j}")
            a(f"v_and_b32 v{base+2*j+1}, s64, v{T+j}")

    rnd(O)
    for j in range(8):
        a(f"v_pk_add_f32 v[{O+2*j}:{O+2*j+1}], v[{O+2*j}:{O+2*j+1}], v[{20+2*(j&1)}:{21+2*(j&1)}]")
    rnd(O)
    a("s_mov_b32 s60, 0xbfb8aa3b")
    for j in range(8):
        a(f"v_pk_mul_f32 v[{96+2*j}:{97+2*j}], v[{O+2*j}:{O+2*j+1}], s[60:61] op_sel_hi:[1,0]")
    for r in range(16):
        a(f"v_exp_f32 v{96+r}, v{96+r}")
    for j in range(8):
        a(f"v_pk_add_f32 v[{96+2*j}:{97+2*j}], v[{96+2*j}:{97+2*j}], 1.0 op_sel_hi:[1,0]")
    for r in range(16):
        a(f"v_rcp_f32 v{96+r}, v{96+r}")
    for j in range(8):
        a(f"v_pk_mul_f32 v[{O+2*j}:{O+2*j+1}], v[{O+2*j}:{O+2*j+1}], v[{96+2*j}:{97+2*j}]")
    rnd(O)
    for j in range(8):
        a(f"v_pk_mul_f32 v[{O+2*j}:{O+2*j+1}], v[{O+2*j}:{O+2*j+1}], v[{48+2*j}:{49+2*j}]")
    rnd(O)
    for j in range(8):
        a(f"v_pk_add_f32 v[{O+2*j}:{O+2*j+1}], v[{O+2*j}:{O+2*j+1}], v[{32+2*j}:{33+2*j}]")
    for j in range(8):
        a(f"v_cvt_pk_bf16_f32 v{T+j}, v{O+2*j}, v{O+2*j+1}")
    for jj in range(4):
        a(f"buffer_store_dwordx2 v[{T+2*jj}:{T+2*jj+1}], v18, s[56:59], s53 offen offset:{1024*jj}")
    endpgm(a, 2)
    a("F_done:")
    a("s_endpgm")
    return a, f"; @launch kernel=fin_kernel grid=({NCV+NG2},1,1) block=(512,1,1) lds={LDS_FIN}"
```

```python
from asmlib import Asm, hexf
from gen import *
import math

NG1 = 224
NKG = 0
LDS_MID = 81920


def epi_setup(a):
    a("v_lshrrev_b32 v5, 5, v1")
    a("v_lshrrev_b32 v6, 1, v2")
    a("v_lshlrev_b32 v3, 7, v6")
    a("v_lshl_add_u32 v3, v5, 3, v3")
    a("s_lshl_b32 s50, s45, 8")
    a("s_lshl_b32 s53, s67, 6")
    a("s_add_u32 s53, s53, s50")
    for qq in range(4):
        a(f"buffer_load_dwordx2 v[{24+2*qq}:{25+2*qq}], v3, s[32:35], s53 offen offset:{16*qq}")
    a("v_lshl_add_u32 v7, v6, 3, v5")
    a("s_lshl_b32 s53, s67, 2")
    a("v_add_u32 v7, s53, v7")
    a("v_and_b32 v9, 15, v1")
    a("v_xor_b32 v7, v7, v9")
    a("v_lshlrev_b32 v7, 4, v7")
    a("v_and_b32 v10, 31, v1")
    a("v_and_b32 v11, 1, v2")
    a("v_lshl_add_u32 v10, v11, 6, v10")
    a("v_lshl_add_u32 v10, v10, 8, v7")
    a("v_add_u32 v10, 49152, v10")
    a("v_xor_b32 v11, 32, v10")
    a("v_add_u32 v7, s53, v2")
    a("v_lshrrev_b32 v13, 4, v1")
    a("v_xor_b32 v12, v9, v13")
    a("v_lshlrev_b32 v12, 4, v12")
    a("v_lshl_add_u32 v13, v7, 4, v13")
    a("v_lshl_add_u32 v12, v13, 8, v12")
    a("v_add_u32 v12, 49152, v12")
    a("v_mul_u32_u24 v13, 3584, v13")
    a("v_lshl_add_u32 v13, v9, 4, v13")
    a("s_mul_i32 s52, s44, 128*3584")
    a("s_add_u32 s52, s52, s50")
    a(f"s_add_u32 s52, s52, {hex(HH)}")
    c0 = -2.0 * math.sqrt(2.0 / math.pi) * math.log2(math.e)
    a(f"s_mov_b32 s54, {hexf(c0 * 0.044715)}")
    a(f"v_mov_b32 v8, {hexf(c0)}")


def gen_gemm1(a):
    a("s_and_b32 s40, s2, 7")
    a("s_lshr_b32 s41, s2, 3")
    a("s_mul_i32 s42, s41, 37")
    a("s_lshr_b32 s42, s42, 8")
    a("s_mul_i32 s43, s42, 7")
    a("s_sub_u32 s43, s41, s43")
    a("s_lshr_b32 s44, s40, 1")
    a("s_lshl_b32 s44, s44, 2")
    a("s_add_u32 s44, s44, s42")
    a("s_and_b32 s45, s40, 1")
    a("s_mul_i32 s45, s45, 7")
    a("s_add_u32 s45, s45, s43")
    a("s_cmp_lt_u32 s46, 4")
    a("s_cbranch_scc1 G1_compute")
    a("s_sub_u32 s46, s46, 4")
    a("v_and_b32 v2, 3, v2")
    a("v_lshrrev_b32 v3, 4, v1")
    a("v_and_b32 v4, 1, v2")
    a("v_lshl_add_u32 v4, v4, 2, v3")
    a("v_and_b32 v5, 7, v1")
    a("v_xor_b32 v4, v4, v5")
    a("v_lshlrev_b32 v4, 4, v4")
    a("v_lshrrev_b32 v5, 3, v1")
    a("v_lshl_add_u32 v10, v5, 10, v4")
    a("v_lshlrev_b32 v4, 2, v3")
    a("v_and_b32 v5, 15, v1")
    a("v_xor_b32 v4, v4, v5")
    a("v_lshlrev_b32 v4, 4, v4")
    a("v_mul_u32_u24 v5, 3584, v3")
    a("v_add_u32 v11, v4, v5")
    a("s_lshl_b32 s48, s44, 17")
    a("s_lshl_b32 s50, s46, 13")
    a("s_add_u32 s48, s48, s50")
    a("s_mul_i32 s49, s46, 14336")
    a("s_lshl_b32 s50, s45, 8")
    a("s_add_u32 s49, s49, s50")
    a("s_lshl_b32 s51, s46, 10")
    a("s_lshl_b32 s60, s42, 1")
    a("s_add_u32 s60, s60, s43")
    a("s_and_b32 s60, s60, 7")
    a("s_mov_b32 s61, s60")

    a(f"s_add_u32 s47, s51, {5*16384}")
    a("s_mov_b32 s65, 0")

    def adv():
        a("s_add_u32 s51, s51, 16384")
        a(f"s_sub_u32 s66, s51, {5*16384}")
        a("s_cmp_ge_u32 s51, s47")
        a("s_cselect_b32 s51, s66, s51")

    def itemA():
        a("s_lshl_b32 s62, s60, 7")
        a("s_add_u32 s62, s62, s48")
        for jj in range(4):
            a(f"s_add_u32 s52, s62, {jj*32768}")
            a(f"s_add_u32 m0, s51, {jj*4096}")
            a("buffer_load_dwordx4 v10, s[24:27], s52 offen lds")
        a("s_add_u32 s60, s60, 1")
        a("s_and_b32 s60, s60, 7")
        adv()

    def itemB():
        a(f"s_mul_i32 s63, s61, {64*3584}")
        a("s_add_u32 s63, s63, s49")
        for jj in range(4):
            a(f"s_add_u32 s52, s63, {jj*16*3584}")
            a(f"s_add_u32 m0, s51, {jj*4096}")
            a("buffer_load_dwordx4 v11, s[28:31], s52 offen lds")
        a("s_add_u32 s61, s61, 1")
        a("s_and_b32 s61, s61, 7")
        adv()

    itemA()
    a("s_branch G1L_pair")
    a("G1L_loop:")
    a("s_waitcnt vmcnt(4)")
    a("s_barrier")
    a("G1L_pair:")
    a.hist = []
    itemB()
    itemA()
    a("s_add_u32 s65, s65, 1")
    a("s_cmp_lt_u32 s65, 7")
    a("s_cbranch_scc1 G1L_loop")
    a("s_waitcnt vmcnt(4)")
    a("s_barrier")
    itemB()
    a("s_waitcnt vmcnt(0)")
    a("s_barrier")
    a("s_mov_b32 s67, 1")
    epi_setup(a)
    a("v_lshlrev_b32 v4, 4, v1")
    a("v_lshl_add_u32 v4, v2, 13, v4")
    a("s_barrier")
    for q in range(8):
        a(f"ds_read_b128 v[{64+4*q}:{67+4*q}], v4 offset:{16384 + 1024*q}")
    a("s_waitcnt lgkmcnt(0)")
    a("s_branch G1_epi")
    a("G1_compute:")
    a.hist = []
    a("v_and_b32 v4, 31, v1")
    a("v_lshrrev_b32 v5, 5, v1")
    a("v_bfe_u32 v6, v1, 1, 3")
    a("v_xor_b32 v6, v6, v5")
    a("v_lshlrev_b32 v6, 4, v6")
    a("v_and_b32 v7, 1, v2")
    a("v_lshl_add_u32 v7, v7, 6, v4")
    a("v_lshl_add_u32 v12, v7, 7, v6")
    for kk in range(1, 4):
        a(f"v_xor_b32 v{12+kk}, {32*kk}, v12")
    a("v_bfe_u32 v4, v1, 2, 2")
    a("v_lshrrev_b32 v6, 5, v1")
    a("v_lshl_add_u32 v6, v6, 3, v4")
    a("v_lshlrev_b32 v6, 8, v6")
    a("v_bfe_u32 v7, v1, 4, 1")
    a("v_lshl_add_u32 v6, v7, 5, v6")
    a("v_and_b32 v7, 3, v1")
    a("v_lshl_add_u32 v6, v7, 3, v6")
    a("v_and_b32 v7, 2, v2")
    a("v_xor_b32 v8, v7, v4")
    a("v_lshl_add_u32 v16, v8, 6, v6")
    a("v_or_b32 v7, 1, v7")
    a("v_xor_b32 v8, v7, v4")
    a("v_lshl_add_u32 v17, v8, 6, v6")
    for r in range(64, 128, 2):
        a(f"v_mov_b64 v[{r}:{r+1}], 0")
    ACC = lambda ni, mi: 64 + 32 * ni + 16 * mi
    XF = lambda s, mi: 32 + 16 * s + 4 * mi
    WF = lambda s, ni: 40 + 16 * s + 4 * ni
    BR = [4, 10, 24, 26, 28, 30, 12, 14]
    a("s_mov_b32 s60, 0")
    a("s_mov_b32 s65, 0")

    def reads(kk):
        s = kk & 1
        for mi in range(2):
            a(f"ds_read_b128 v[{XF(s,mi)}:{XF(s,mi)+3}], v{18+kk} offset:{4096*mi}")
        for ni in range(2):
            for hf in range(2):
                a(f"ds_read_b64_tr_b16 v[{WF(s,ni)+2*hf}:{WF(s,ni)+2*hf+1}], v{22+ni} offset:{(16*kk+4*hf)*256}")

    a("G1C_loop:")
    a("s_add_u32 s61, s60, 16384")
    a(f"s_cmp_eq_u32 s61, {5*16384}")
    a("s_cselect_b32 s61, 0, s61")
    for i in range(4):
        a(f"v_add_u32 v{18+i}, s60, v{12+i}")
    for i in range(2):
        a(f"v_add_u32 v{22+i}, s61, v{16+i}")
    a("s_add_u32 s60, s61, 16384")
    a(f"s_cmp_eq_u32 s60, {5*16384}")
    a("s_cselect_b32 s60, 0, s60")
    a("s_barrier")
    if PROF:
        a("s_cmp_lg_u32 s65, 0")
        a("s_cbranch_scc1 G1C_nostamp")
        stamp_mid(a, 0, "A")
        a("G1C_nostamp:")
    reads(0)
    a("s_add_u32 s65, s65, 1")
    for kk in range(4):
        if kk < 3:
            reads(kk + 1)
        a(f"s_waitcnt lgkmcnt({6 if kk < 3 else 0})")
        s = kk & 1
        for ni in range(2):
            for mi in range(2):
                c = ACC(ni, mi)
                a(f"v_mfma_f32_32x32x16_bf16 v[{c}:{c+15}], v[{WF(s,ni)}:{WF(s,ni)+3}], v[{XF(s,mi)}:{XF(s,mi)+3}], v[{c}:{c+15}]")
    a("s_cmp_lt_u32 s65, 8")
    a("s_cbranch_scc1 G1C_loop")
    stamp_mid(a, 1, "A")
    a("s_mov_b32 s67, 0")
    epi_setup(a)
    a("v_lshlrev_b32 v4, 4, v1")
    a("v_lshl_add_u32 v4, v2, 13, v4")
    for q in range(8):
        a(f"ds_write_b128 v4, v[{96+4*q}:{99+4*q}] offset:{16384 + 1024*q}")
    a("s_waitcnt lgkmcnt(0)")
    a("s_barrier")
    a("G1_epi:")
    a.hist = []
    T0, BU = 32, 48
    a("s_waitcnt vmcnt(0)")
    for qq in range(4):
        for j in range(2):
            src = 24 + 2 * qq + j
            a(f"v_lshlrev_b32 v{BU+4*qq+2*j}, 16, v{src}")
            a(f"v_and_b32 v{BU+4*qq+2*j+1}, s64, v{src}")
    for mi in range(2):
        c = 64 + 16 * mi
        for j in range(8):
            a(f"v_cvt_pk_bf16_f32 v{T0+j}, v{c+2*j}, v{c+2*j+1}")
        for j in range(8):
            a(f"v_lshlrev_b32 v{c+2*j}, 16, v{T0+j}")
            a(f"v_and_b32 v{c+2*j+1}, s64, v{T0+j}")
        for j in range(8):
            a(f"v_pk_add_f32 v[{c+2*j}:{c+2*j+1}], v[{c+2*j}:{c+2*j+1}], v[{BU+2*j}:{BU+2*j+1}]")
        for j in range(8):
            a(f"v_cvt_pk_bf16_f32 v{T0+j}, v{c+2*j}, v{c+2*j+1}")
        for j in range(8):
            a(f"v_lshlrev_b32 v{c+2*j}, 16, v{T0+j}")
            a(f"v_and_b32 v{c+2*j+1}, s64, v{T0+j}")
        for j in range(8):
            a(f"v_pk_mul_f32 v[{T0+2*j}:{T0+2*j+1}], v[{c+2*j}:{c+2*j+1}], v[{c+2*j}:{c+2*j+1}]")
        for j in range(8):
            a(f"v_pk_fma_f32 v[{T0+2*j}:{T0+2*j+1}], v[{T0+2*j}:{T0+2*j+1}], s[54:55], v[8:9] op_sel_hi:[1,0,0]")
        for j in range(8):
            a(f"v_pk_mul_f32 v[{T0+2*j}:{T0+2*j+1}], v[{T0+2*j}:{T0+2*j+1}], v[{c+2*j}:{c+2*j+1}]")
        for r in range(16):
            a(f"v_exp_f32 v{T0+r}, v{T0+r}")
        for j in range(8):
            a(f"v_pk_add_f32 v[{T0+2*j}:{T0+2*j+1}], v[{T0+2*j}:{T0+2*j+1}], 1.0 op_sel_hi:[1,0]")
        for r in range(16):
            a(f"v_rcp_f32 v{T0+r}, v{T0+r}")
        for j in range(8):
            a(f"v_pk_mul_f32 v[{T0+2*j}:{T0+2*j+1}], v[{T0+2*j}:{T0+2*j+1}], v[{c+2*j}:{c+2*j+1}]")
        for j in range(8):
            a(f"v_cvt_pk_bf16_f32 v{c+j}, v{T0+2*j}, v{T0+2*j+1}")
        for p in range(2):
            a(f"v_permlane32_swap_b32 v{c+4*p}, v{c+2+4*p}")
            a(f"v_permlane32_swap_b32 v{c+1+4*p}, v{c+3+4*p}")
        for p in range(2):
            a(f"ds_write_b128 v{10+p}, v[{c+4*p}:{c+3+4*p}] offset:{8192*mi}")
    for j in range(1, 4):
        a(f"v_xor_b32 v{13+j}, {64*j}, v12")
        a(f"s_add_u32 s{56+j}, s52, {4*3584*j}")
    a("s_waitcnt lgkmcnt(0)")
    a("s_barrier")
    a("ds_read_b128 v[32:35], v12")
    for j in range(1, 4):
        a(f"ds_read_b128 v[{32+4*j}:{35+4*j}], v{13+j} offset:{1024*j}")
    for j in range(4):
        a(f"s_waitcnt lgkmcnt({3-j})")
        a(f"buffer_store_dwordx4 v[{32+4*j}:{35+4*j}], v13, s[24:27], s{52 if j == 0 else 56+j} offen sc1")
    stamp_mid(a, 0, "D")
    a("s_waitcnt vmcnt(0)")
    stamp_mid(a, 1, "D")
    a("s_barrier")
    stamp_mid(a, 0, "B")
    a("v_readfirstlane_b32 s46, v0")
    a("s_cmp_lg_u32 s46, 0")
    a("s_cbranch_scc1 G1_sigdone")
    a("v_mov_b32 v24, 1")
    a("v_mov_b32 v25, 0")
    a("s_lshl_b32 s46, s44, 8")
    a(f"s_add_u32 s46, s46, {hex(CNT + 256)}")
    a("s_mov_b64 exec, 1")
    a("buffer_atomic_add v24, v25, s[24:27], s46 offen sc1")
    a("s_mov_b64 exec, -1")
    a("G1_sigdone:")


def gen_kgen(a):
    a("s_lshr_b32 s47, s46, 2")
    a("v_and_b32 v0, 255, v0")
    a("v_and_b32 v2, 3, v2")
    a("s_lshl_b32 s45, s47, 14")
    srd(a, 28, 68, 512 * 128 * 2)
    srd(a, 32, 70, 512 * 128 * 2)
    srd(a, 36, 72, 512 * 128 * 2)
    srd(a, 40, 74, 512 * 128 * 2)
    srd(a, 48, 76, 512 * 2)
    a(f"s_sub_u32 s3, s2, {NG1}")
    a("s_lshl_b32 s3, s3, 1")
    a("s_add_u32 s3, s3, s47")
    a("s_lshl_b32 s8, s3, 8")
    a("s_lshl_b32 s9, s3, 1")
    a("v_mov_b32 v5, 0")
    a("buffer_load_ushort v96, v5, s[48:51], s9 offen")
    a("v_lshlrev_b32 v4, 2, v1")
    a("buffer_load_dword v98, v4, s[36:39], s8 offen")
    a("buffer_load_dword v99, v4, s[40:43], s8 offen")
    a("v_lshrrev_b32 v3, 4, v1")
    a("v_lshlrev_b32 v6, 3, v3")
    a("v_lshl_add_u32 v6, v2, 6, v6")
    for ks in range(2):
        for k in range(4):
            a(f"buffer_load_dwordx2 v[{64+8*ks+2*k}:{65+8*ks+2*k}], v6, s[{28+4*k}:{31+4*k}], s8 offen offset:{32*ks}")
    a("s_mov_b32 s60, 0x3fb8aa3b")
    a("s_mov_b32 s62, 0x32a57060")
    a(f"s_mov_b32 s66, {hexf(math.log(2))}")
    a("v_and_b32 v4, 15, v1")
    a("v_lshlrev_b32 v8, 4, v4")
    a("v_mov_b32 v9, v4")
    a("v_lshlrev_b32 v10, 1, v4")
    a("v_add_u32 v10, 256, v10")
    a("v_bfe_u32 v32, v4, 2, 1")
    a("v_lshlrev_b32 v32, 8, v32")
    a("v_and_b32 v33, 3, v4")
    a("v_lshl_add_u32 v32, v33, 2, v32")
    a("v_add_u32 v32, 512, v32")
    a("v_cmp_gt_u32 vcc, 8, v4")
    a("v_cndmask_b32 v10, v32, v10, vcc")
    a("v_lshrrev_b32 v32, 1, v4")
    a("v_lshlrev_b32 v32, 8, v32")
    a("v_and_b32 v33, 1, v4")
    a("v_lshl_add_u32 v32, v33, 3, v32")
    a("v_add_u32 v11, 1024, v32")
    a("v_mov_b32 v33, 2304")
    a("v_cmp_gt_u32 vcc, 9, v4")
    a("v_cndmask_b32 v11, v33, v11, vcc")
    for r in (8, 9, 10, 11):
        a(f"v_cvt_f32_u32 v{r}, v{r}")
    a("v_mov_b32 v30, v11")
    a("v_mov_b32 v28, v10")
    a(f"v_mul_u32_u24 v32, {TS}, v2")
    a("v_add_u32 v32, s45, v32")
    a("v_lshl_add_u32 v12, v4, 2, v32")
    a("v_lshl_add_u32 v12, v3, 8, v12")
    a("v_mov_b32 v15, 64")
    for t in (1, 2):
        a(f"v_lshrrev_b32 v33, 16, v{9+t}")
        a("v_subrev_u32 v33, 0x4280, v33")
        a(f"v_lshrrev_b32 v34, 23, v{9+t}")
        a("v_subrev_u32 v34, 134, v34")
        a(f"v_lshrrev_b32 v{15+t}, v34, v15")
        a(f"v_mul_u32_u24 v35, v{15+t}, v3")
        a("v_lshl_add_u32 v35, v35, 2, v32")
        a(f"v_lshl_add_u32 v{12+t}, v33, 2, v35")
    a("v_mov_b32 v10, v9")
    for r in range(116, 128, 2):
        a(f"v_mov_b64 v[{r}:{r+1}], 0")
    a("v_lshlrev_b32 v32, 3, v0")
    a("v_sub_u32 v32, 2047, v32")
    for e in range(9):
        a(f"v_subrev_u32 v{18+e}, {e}, v32")
    a("v_max_i32 v26, 0, v26")
    for e in range(9):
        a(f"v_cvt_f32_u32 v{32+e}, v{18+e}")
    for j in range(5):
        a(f"v_cvt_pk_bf16_f32 v{32+2*j}, v{32+2*j}, v{min(33+2*j, 40)}")
    for j in range(5):
        if j < 4:
            a(f"v_lshrrev_b32 v{33+2*j}, 16, v{32+2*j}")
        a(f"v_and_b32 v{32+2*j}, 0xffff, v{32+2*j}")
    for e in range(9):
        a(f"v_subrev_u32 v{32+e}, 0x4280, v{32+e}")
    for e in range(9):
        a(f"v_cmp_gt_u32 vcc, 128, v{18+e}")
        a(f"v_cndmask_b32 v{18+e}, v{32+e}, v{18+e}, vcc")
    for e in range(9):
        a(f"v_lshl_add_u32 v{18+e}, v{18+e}, 2, s45")
    a("s_waitcnt vmcnt(10)")
    a("v_lshlrev_b32 v96, 16, v96")
    a("v_mul_f32 v4, s60, v96")
    a("v_fma_f32 v5, v96, s60, -v4")
    a("v_fma_f32 v5, v96, s62, v5")
    a("v_exp_f32 v4, v4")
    a("v_mul_f32 v5, s66, v5")
    a("v_fma_f32 v96, v4, v5, v4")
    a("v_cvt_pk_bf16_f32 v96, v96, v96")
    a("v_and_b32 v96, s64, v96")
    a("s_waitcnt vmcnt(8)")
    a("v_lshlrev_b32 v4, 16, v98")
    a("v_and_b32 v5, s64, v98")
    a("v_lshlrev_b32 v6, 16, v99")
    a("v_and_b32 v7, s64, v99")
    a("v_add_f32 v4, |v4|, |v5|")
    a("v_add_f32 v6, |v6|, |v7|")
    a("v_add_f32 v98, v4, v6")
    reduce_sum(a, [98], [99])
    a("v_mul_f32 v98, v98, v96")
    a("v_add_f32 v98, v98, v98")
    a("v_lshrrev_b32 v98, 23, v98")
    a("v_sub_u32 v98, 268, v98")
    a("v_min_u32 v98, 240, v98")
    a("v_sub_u32 v99, 244, v98")
    a("v_lshlrev_b32 v99, 23, v99")
    a("v_lshlrev_b32 v98, 23, v98")
    a("v_mul_f32 v98, v98, v96")
    a("v_add_f32 v98, v98, v98")
    a("v_mul_f32 v4, 0xbfb8aa3b, v96")
    a("v_mul_f32 v5, 0.15915494, v96")

    def cexp(preg):
        pp = preg & ~1
        sel = "op_sel_hi:[1,0]" if preg == pp else "op_sel:[0,1] op_sel_hi:[1,1]"
        for u in range(4):
            a(f"v_pk_mul_f32 v[{48+2*u}:{49+2*u}], v[{32+2*u}:{33+2*u}], v[{pp}:{pp+1}] {sel}")
        for u in range(4):
            a(f"v_fract_f32 v{49+2*u}, v{49+2*u}")
        for u in range(4):
            a(f"v_exp_f32 v{48+2*u}, v{48+2*u}")
            a(f"v_cos_f32 v{56+2*u}, v{49+2*u}")
            a(f"v_sin_f32 v{57+2*u}, v{49+2*u}")
        for u in range(4):
            a(f"v_pk_mul_f32 v[{56+2*u}:{57+2*u}], v[{56+2*u}:{57+2*u}], v[{48+2*u}:{49+2*u}] op_sel_hi:[1,0]")

    for ks in range(2):
        R = 64 + 8 * ks
        a(f"s_waitcnt vmcnt({4*(1-ks)})")
        for j in range(2):
            a(f"v_lshlrev_b32 v{48+2*j}, 16, v{R+j}")
            a(f"v_and_b32 v{49+2*j}, s64, v{R+j}")
        for j in range(2):
            a(f"v_pk_mul_f32 v[{52+2*j}:{53+2*j}], v[{48+2*j}:{49+2*j}], s[60:61] op_sel_hi:[1,0]")
        for j in range(2):
            a(f"v_pk_fma_f32 v[{56+2*j}:{57+2*j}], v[{48+2*j}:{49+2*j}], s[60:61], v[{52+2*j}:{53+2*j}] op_sel_hi:[1,0,1] neg_lo:[0,0,1] neg_hi:[0,0,1]")
        for j in range(2):
            a(f"v_pk_fma_f32 v[{56+2*j}:{57+2*j}], v[{48+2*j}:{49+2*j}], s[62:63], v[{56+2*j}:{57+2*j}] op_sel_hi:[1,0,1]")
        for u in range(4):
            a(f"v_exp_f32 v{52+u}, v{52+u}")
        for j in range(2):
            a(f"v_pk_mul_f32 v[{56+2*j}:{57+2*j}], v[{56+2*j}:{57+2*j}], s[66:67] op_sel_hi:[1,0]")
        for j in range(2):
            a(f"v_pk_fma_f32 v[{52+2*j}:{53+2*j}], v[{52+2*j}:{53+2*j}], v[{56+2*j}:{57+2*j}], v[{52+2*j}:{53+2*j}]")
        for j in range(2):
            a(f"v_cvt_pk_bf16_f32 v{48+j}, v{52+2*j}, v{53+2*j}")
        for j in range(2):
            a(f"v_lshlrev_b32 v{32+4*j}, 16, v{48+j}")
            a(f"v_and_b32 v{34+4*j}, s64, v{48+j}")
            a(f"v_lshlrev_b32 v{33+4*j}, 16, v{R+2+j}")
            a(f"v_and_b32 v{35+4*j}, s64, v{R+2+j}")
            a(f"v_lshlrev_b32 v{40+4*j}, 16, v{R+4+j}")
            a(f"v_and_b32 v{42+4*j}, s64, v{R+4+j}")
            a(f"v_lshlrev_b32 v{41+4*j}, 16, v{R+6+j}")
            a(f"v_and_b32 v{43+4*j}, s64, v{R+6+j}")
        for u in range(4):
            a(f"v_pk_mul_f32 v[{32+2*u}:{33+2*u}], v[{32+2*u}:{33+2*u}], v[4:5]")
            a(f"v_pk_mul_f32 v[{40+2*u}:{41+2*u}], v[{40+2*u}:{41+2*u}], v[98:99] op_sel_hi:[1,0]")
        cexp(8)
        for u in range(4):
            a(f"v_pk_mul_f32 v[{100+2*u}:{101+2*u}], v[{56+2*u}:{57+2*u}], v[{40+2*u}:{41+2*u}] op_sel_hi:[1,0] neg_hi:[0,1]")
        for u in range(4):
            a(f"v_fma_f32 v{100+2*u}, -v{41+2*u}, v{57+2*u}, v{100+2*u}")
            a(f"v_fma_f32 v{101+2*u}, -v{41+2*u}, v{56+2*u}, v{101+2*u}")
        for u in range(4):
            a(f"v_cvt_pk_f16_f32 v{108+u}, v{100+2*u}, v{101+2*u}")
        for t in range(3):
            cexp((10, 28, 30)[t])
            for u in range(4):
                a(f"v_cvt_pk_f16_f32 v{112+u}, v{56+2*u}, v{57+2*u}")
            acc = f"v[{116+4*t}:{119+4*t}]"
            a(f"v_mfma_f32_16x16x32_f16 {acc}, v[108:111], v[112:115], {acc}")
    a("v_lshl_add_u32 v4, v0, 2, s45")
    a(f"s_mul_i32 s8, s3, {KRS}")
    a(f"s_add_u32 s12, s8, {hex(KR2)}")
    a(f"s_add_u32 s8, s8, {hex(KR)}")
    a("v_lshlrev_b32 v5, 4, v0")
    a("s_lshl_b32 s9, s3, 2")
    a(f"s_add_u32 s9, s9, {hex(KINV)}")
    for t in range(3):
        for r in range(4):
            a(f"ds_write_b32 v{12+t}, v{116+4*t+r}")
            if r < 3:
                a(f"v_add_u32 v{12+t}, v{12+t}, v{15+t}")
    a("s_waitcnt lgkmcnt(0)")
    a("s_barrier")
    for k in range(3):
        for w in range(4):
            a(f"ds_read_b32 v{32+4*k+w}, v4 offset:{TS*w + 1024*k}")
    a("s_waitcnt lgkmcnt(0)")
    for k in range(3):
        a(f"v_pk_add_f32 v[{32+4*k}:{33+4*k}], v[{32+4*k}:{33+4*k}], v[{34+4*k}:{35+4*k}]")
    for k in range(3):
        a(f"v_add_f32 v{32+4*k}, v{32+4*k}, v{33+4*k}")
    for k in range(3):
        a(f"ds_write_b32 v4, v{32+4*k} offset:{4*TS + 1024*k}")
    a("s_waitcnt lgkmcnt(0)")
    a("s_barrier")
    for e in range(9):
        a(f"ds_read_b32 v{32+e}, v{18+e} offset:{4*TS}")
    a("v_cmp_gt_u32 vcc, 255, v0")
    a("v_mov_b64 v[52:53], 0")
    a("v_mov_b64 v[54:55], 0")
    a("s_waitcnt lgkmcnt(0)")
    a("v_cndmask_b32 v40, 0, v40, vcc")
    for j in range(4):
        a(f"v_cvt_pk_f16_f32 v{44+j}, v{32+2*j}, v{33+2*j}")
        a(f"v_cvt_pk_f16_f32 v{48+j}, v{33+2*j}, v{34+2*j}")
    a("buffer_store_dwordx4 v[44:47], v5, s[24:27], s8 offen sc1")
    a("buffer_store_dwordx4 v[48:51], v5, s[24:27], s12 offen sc1")
    a("v_add_u32 v5, 4096, v5")
    a("v_cmp_gt_u32 vcc, 4, v0")
    a("s_and_saveexec_b64 s[10:11], vcc")
    a("s_cbranch_execz P_done2")
    a("buffer_store_dwordx4 v[52:55], v5, s[24:27], s8 offen")
    a("buffer_store_dwordx4 v[52:55], v5, s[24:27], s12 offen")
    a("buffer_store_dword v99, v52, s[24:27], s9 offen")
    a("P_done2:")
    if PROF:
        a("s_mov_b64 exec, -1")
        a("v_lshl_add_u32 v0, s47, 8, v0")
    endpgm(a, 1)


def gen_mid():
    a = Asm()
    kernel_head(a, "mid_kernel")
    a(f"s_cmp_ge_u32 s2, {NG1 + NKG}")
    a("s_cbranch_scc1 M_done")
    stamp_start(a)
    a("s_load_dwordx2 s[4:5], s[0:1], 112")
    a("s_load_dwordx4 s[8:11], s[0:1], 64")
    a("v_and_b32 v1, 63, v0")
    a("v_lshrrev_b32 v2, 6, v0")
    a("s_mov_b32 s64, 0xffff0000")
    a("v_readfirstlane_b32 s46, v2")
    a("s_waitcnt lgkmcnt(0)")
    srd(a, 24, 4, WS_USED)
    srd(a, 28, 8, 512 * 1792 * 2)
    srd(a, 32, 10, 1792 * 2)
    if os.environ.get("ROLE") == "conv":
        a("s_endpgm")
    gen_gemm1(a)
    a("M_done:")
    a("s_endpgm")
    return a, f"; @launch kernel=mid_kernel grid=({NG1+NKG},1,1) block=(512,1,1) lds={LDS_MID}"
```

```python
from asmlib import Asm, hexf
from gen import *
import math
import gen2

NCV = 256
NG2 = 256
LDS_FIN = 81920
NKS = 14
HBS = 40192
XMO = 33792


def gen_conv(a):
    a(f"s_setprio {os.environ.get('CPRIO', '0')}")
    a("s_lshr_b32 s47, s46, 2")
    a("s_and_b32 s46, s46, 3")
    a("v_and_b32 v0, 255, v0")
    a("v_and_b32 v2, 3, v2")
    a(f"s_sub_u32 s3, s2, {NG2}")
    a("s_lshl_b32 s3, s3, 1")
    a("s_add_u32 s3, s3, s47")
    a(f"s_mul_i32 s45, s47, {HBS}")
    a("v_sub_u32 v3, 2079, v1")
    a("v_and_b32 v4, 1, v3")
    a("v_and_b32 v3, 0xfffffffe, v3")
    a("v_lshlrev_b32 v3, 1, v3")
    a(f"s_mov_b32 s40, {hex(KR2 - KR)}")
    a("v_mul_lo_u32 v4, v4, s40")
    a("v_add_u32 v3, v3, v4")
    a(f"s_mul_i32 s40, s3, {KRS}")
    a(f"s_add_u32 s40, s40, {hex(KR)}")
    a("s_lshl_b32 s41, s46, 7")
    a("s_sub_u32 s40, s40, s41")
    a("s_lshl_b32 s41, s46, 10")
    a("s_add_u32 s41, s41, s45")
    a("v_lshlrev_b32 v4, 4, v0")
    a("s_lshl_b32 s43, s3, 12")
    a(f"s_add_u32 s44, s43, {hex(XT)}")
    a("s_waitcnt lgkmcnt(0)")
    srd(a, 24, 4, WS_USED)
    srd(a, 36, 14, 512 * 2)
    if os.environ.get("ROLE") == "noconv":
        a("s_branch C_sig")
    a("buffer_load_dwordx4 v[8:11], v4, s[24:27], s44 offen")
    a("v_mov_b32 v5, 0")
    a("s_lshl_b32 s44, s3, 1")
    a("buffer_load_ushort v20, v5, s[36:39], s44 offen")
    a("s_lshl_b32 s44, s3, 2")
    a(f"s_add_u32 s44, s44, {hex(KINV)}")
    a("buffer_load_dword v22, v5, s[24:27], s44 offen")
    for jj in range(8):
        a(f"s_sub_u32 s42, s40, {512*jj}")
        a(f"s_add_u32 m0, s41, {4096*jj}")
        a("buffer_load_dwordx4 v3, s[24:27], s42 offen lds")
    a("s_cmp_lg_u32 s46, 0")
    a("s_cbranch_scc1 C_skip33")
    a(f"s_sub_u32 s42, s40, {512*8}")
    a(f"s_add_u32 m0, s41, {4096*8}")
    a("s_nop 0")
    a("buffer_load_dwordx4 v3, s[24:27], s42 offen lds")
    a("C_skip33:")
    a.hist = []
    a("v_mov_b64 v[12:13], 0")
    a("v_mov_b64 v[14:15], 0")
    a(f"v_min_u32 v5, {79*16}, v4")
    a("v_add_u32 v5, s45, v5")
    a(f"ds_write_b128 v5, v[12:15] offset:{XMO}")
    a("v_lshrrev_b32 v5, 2, v0")
    a("v_mul_u32_u24 v5, 80, v5")
    a("v_and_b32 v6, 3, v0")
    a("v_lshl_add_u32 v5, v6, 4, v5")
    a("v_add_u32 v5, s45, v5")
    a("v_and_b32 v6, 15, v1")
    a("v_lshrrev_b32 v7, 4, v1")
    a("v_lshlrev_b32 v16, 4, v6")
    a("v_lshlrev_b32 v17, 7, v7")
    a("v_sub_u32 v16, v16, v17")
    a("v_lshl_add_u32 v16, v2, 9, v16")
    a("v_add_u32 v16, s45, v16")
    a("v_add_u32 v16, 512, v16")
    a("v_add_u32 v17, 4, v6")
    a("v_sub_u32 v17, v17, v2")
    a("v_mul_u32_u24 v17, 80, v17")
    a("v_lshl_add_u32 v17, v7, 4, v17")
    a("v_add_u32 v17, s45, v17")
    for r in range(96, 128, 2):
        a(f"v_mov_b64 v[{r}:{r+1}], 0")
    a("s_waitcnt vmcnt(9)")
    a(f"ds_write_b128 v5, v[8:11] offset:{XMO + 16*80}")
    a("s_waitcnt vmcnt(0) lgkmcnt(0)")
    a("s_barrier")
    stamp_mid(a, 0)
    AF = lambda k, hf: 24 + 8 * k + 4 * hf
    BF = lambda s, t: 56 + 16 * s + 4 * t
    ACC = lambda hf, t: 96 + 16 * hf + 4 * t

    def rdA(it, k):
        for hf in range(2):
            a(f"ds_read_b128 v[{AF(k,hf)}:{AF(k,hf)+3}], v16 offset:{2048*it + 8192*k + 256*hf}")

    def rdB(it):
        for t in range(4):
            a(f"ds_read_b128 v[{BF(it&1,t)}:{BF(it&1,t)+3}], v17 offset:{XMO + (12-4*it)*80 + 1280*t}")

    rdB(0)
    for k in range(4):
        rdA(0, k)
    for it in range(4):
        last = it == 3
        if it == 0:
            a("s_waitcnt lgkmcnt(8)")
        if not last:
            rdB(it + 1)
        for k in range(4):
            a(f"s_waitcnt lgkmcnt({10 if not last else 2*(3-k)})")
            for t in range(k, 4):
                for hf in range(2):
                    c = ACC(hf, t)
                    a(f"v_mfma_f32_16x16x32_f16 v[{c}:{c+3}], v[{AF(k,hf)}:{AF(k,hf)+3}], v[{BF(it&1,t-k)}:{BF(it&1,t-k)+3}], v[{c}:{c+3}]")
            if not last:
                rdA(it + 1, k)
    a("v_lshlrev_b32 v4, 4, v1")
    a("v_add_u32 v4, s45, v4")
    a("v_lshl_add_u32 v5, v2, 11, v4")
    a("v_lshl_add_u32 v4, v2, 13, v4")
    a("v_and_b32 v8, 1, v2")
    a("v_lshl_add_u32 v8, v8, 5, v6")
    a("v_lshrrev_b32 v9, 1, v2")
    a("v_lshlrev_b32 v9, 5, v9")
    a("v_lshl_add_u32 v9, v7, 3, v9")
    a("v_mul_u32_u24 v10, 80, v8")
    a("v_add_u32 v10, v10, v9")
    a("v_add_u32 v10, s45, v10")
    a("v_lshl_add_u32 v11, v8, 6, v9")
    a("v_add_u32 v11, s45, v11")
    a(f"s_add_u32 s43, s43, {hex(ST)}")
    a("v_lshlrev_b32 v20, 16, v20")
    a(f"v_mul_f32 v20, {hexf(1/1024)}, v20")
    a("s_barrier")
    stamp_mid(a, 1)
    for q in range(8):
        a(f"ds_write_b128 v4, v[{96+4*q}:{99+4*q}] offset:{1024*q}")
    for j in range(2):
        a(f"ds_read_b64 v[{12+2*j}:{13+2*j}], v10 offset:{XMO + 16*80 + 1280*j}")
    a("s_waitcnt lgkmcnt(0)")
    a("s_barrier")
    for j in range(2):
        for w in range(4):
            a(f"ds_read_b128 v[{24+16*j+4*w}:{27+16*j+4*w}], v5 offset:{8192*w + 1024*j}")
    for j in range(2):
        b = 64 + 16 * j
        for e2 in range(2):
            a(f"v_cvt_f32_f16 v{b+4+2*e2}, v{12+2*j+e2}")
            a(f"v_lshrrev_b32 v{b+5+2*e2}, 16, v{12+2*j+e2}")
        for e2 in range(2):
            a(f"v_cvt_f32_f16 v{b+5+2*e2}, v{b+5+2*e2}")
        for e2 in range(2):
            a(f"v_pk_mul_f32 v[{b+4+2*e2}:{b+5+2*e2}], v[{b+4+2*e2}:{b+5+2*e2}], v[20:21] op_sel_hi:[1,0]")
        for e2 in range(2):
            a(f"v_cvt_pk_bf16_f32 v{b+10+e2}, v{b+4+2*e2}, v{b+5+2*e2}")
        for e2 in range(2):
            a(f"v_lshlrev_b32 v{b+4+2*e2}, 16, v{b+10+e2}")
            a(f"v_and_b32 v{b+5+2*e2}, s64, v{b+10+e2}")
    a("s_waitcnt lgkmcnt(0)")
    for j in range(2):
        b = 64 + 16 * j
        p = 24 + 16 * j
        for e in range(0, 4, 2):
            a(f"v_pk_add_f32 v[{p+e}:{p+e+1}], v[{p+e}:{p+e+1}], v[{p+4+e}:{p+5+e}]")
            a(f"v_pk_add_f32 v[{p+8+e}:{p+9+e}], v[{p+8+e}:{p+9+e}], v[{p+12+e}:{p+13+e}]")
        for e in range(0, 4, 2):
            a(f"v_pk_add_f32 v[{b+e}:{b+e+1}], v[{p+e}:{p+e+1}], v[{p+8+e}:{p+9+e}]")
        for e in range(0, 4, 2):
            a(f"v_pk_mul_f32 v[{b+e}:{b+e+1}], v[{b+e}:{b+e+1}], v[22:23] op_sel_hi:[1,0]")
        for e2 in range(2):
            a(f"v_cvt_pk_bf16_f32 v{b+8+e2}, v{b+2*e2}, v{b+2*e2+1}")
        for e2 in range(2):
            a(f"v_lshlrev_b32 v{b+2*e2}, 16, v{b+8+e2}")
            a(f"v_and_b32 v{b+2*e2+1}, s64, v{b+8+e2}")
        for e in range(0, 4, 2):
            a(f"v_pk_add_f32 v[{b+e}:{b+e+1}], v[{b+e}:{b+e+1}], v[{b+4+e}:{b+5+e}]")
        for e2 in range(2):
            a(f"v_cvt_pk_bf16_f32 v{b+8+e2}, v{b+2*e2}, v{b+2*e2+1}")
    a("v_lshlrev_b32 v4, 4, v0")
    a("v_add_u32 v5, s45, v4")
    a("s_barrier")
    for j in range(2):
        a(f"ds_write_b64 v11, v[{72+16*j}:{73+16*j}] offset:{1024*j}")
    a("s_waitcnt lgkmcnt(0)")
    a("s_barrier")
    a("ds_read_b128 v[24:27], v5")
    a("s_waitcnt lgkmcnt(0)")
    a("buffer_store_dwordx4 v[24:27], v4, s[24:27], s43 offen sc1")
    a("s_waitcnt vmcnt(0)")
    a("s_barrier")
    a("C_sig:")
    a("s_or_b32 s40, s46, s47")
    a("s_cmp_lg_u32 s40, 0")
    a("s_cbranch_scc1 C_end")
    a("v_mov_b32 v24, 1")
    a("v_mov_b32 v25, 0")
    a(f"s_mov_b32 s40, {hex(CNT)}")
    a("s_mov_b64 exec, 1")
    a("buffer_atomic_add v24, v25, s[24:27], s40 offen sc1")
    a("s_mov_b64 exec, -1")
    a("C_end:")
    if PROF:
        a("v_lshl_add_u32 v0, s47, 8, v0")
    endpgm(a, 1)


def gen_fin():
    a = Asm()
    kernel_head(a, "fin_kernel")
    a(f"s_cmp_ge_u32 s2, {NCV + NG2}")
    a("s_cbranch_scc1 F_done")
    stamp_start(a)
    a("s_load_dwordx2 s[4:5], s[0:1], 112")
    a("s_load_dwordx4 s[8:11], s[0:1], 80")
    a("s_load_dwordx2 s[6:7], s[0:1], 0")
    a("s_load_dwordx2 s[12:13], s[0:1], 96")
    a("s_load_dwordx2 s[14:15], s[0:1], 48")
    a("s_load_dwordx2 s[16:17], s[0:1], 104")
    a("s_load_dwordx4 s[72:75], s[0:1], 64")
    a("v_and_b32 v1, 63, v0")
    a("v_lshrrev_b32 v2, 6, v0")
    a("s_mov_b32 s64, 0xffff0000")
    a("v_readfirstlane_b32 s46, v2")
    a(f"s_cmp_lt_u32 s2, {NG2}")
    a("s_cbranch_scc1 F_gemm")
    gen_conv(a)
    a("F_gemm:")
    a.hist = []
    a(f"s_setprio {os.environ.get('GPRIO', '2')}")
    a("s_waitcnt lgkmcnt(0)")
    srd(a, 24, 4, WS_USED)
    a(f"s_cmp_lt_u32 s2, {gen2.NG1}")
    a("s_cbranch_scc1 F_g1")
    srd(a, 28, 8, 1792 * 512 * 2)
    a(f"s_sub_u32 s40, s2, {gen2.NG1}")
    a("s_lshr_b32 s40, s40, 3")
    a(f"s_mul_i32 s40, s40, {1792*1024//4}")
    a("v_lshlrev_b32 v4, 7, v0")
    for j in range(7):
        a(f"s_add_u32 s41, s40, {65536*j}")
        a(f"buffer_load_dword v{8+j}, v4, s[28:31], s41 offen")
    a("s_waitcnt vmcnt(0)")
    a("s_branch F_g2")
    a("F_g1:")
    a.hist = []
    srd(a, 28, 72, 512 * 1792 * 2)
    srd(a, 32, 74, 1792 * 2)
    gen2.gen_gemm1(a)
    a("F_g2:")
    a.hist = []
    a("v_lshrrev_b32 v2, 6, v0")
    a("s_nop 1")
    a("v_readfirstlane_b32 s46, v2")
    a("s_and_b32 s40, s2, 7")
    a("s_lshr_b32 s41, s2, 3")
    a("s_lshr_b32 s44, s41, 3")
    a("s_lshl_b32 s40, s40, 2")
    a("s_add_u32 s44, s44, s40")
    a("s_and_b32 s45, s41, 7")
    a("s_cmp_lg_u32 s46, 0")
    a("s_cbranch_scc1 FL_go")
    a("s_lshr_b32 s50, s44, 1")
    a("s_lshl_b32 s50, s50, 8")
    a(f"s_add_u32 s50, s50, {hex(CNT + 256)}")
    a("v_mov_b32 v4, 0")
    a("FL_poll:")
    a("buffer_load_dword v5, v4, s[24:27], s50 offen sc1")
    a("s_waitcnt vmcnt(0)")
    a("v_readfirstlane_b32 s52, v5")
    a("s_cmp_ge_u32 s52, 14")
    a("s_cbranch_scc1 FL_go")
    a("s_sleep 16")
    a("s_branch FL_poll")
    a("FL_go:")
    a.hist = []
    a("s_barrier")
    stamp_mid(a, 1, "B")
    a("s_cmp_lt_u32 s46, 4")
    a("s_cbranch_scc1 F_compute")
    a("s_sub_u32 s46, s46, 4")
    a("v_and_b32 v2, 3, v2")
    a("v_lshrrev_b32 v3, 4, v1")
    a("v_lshl_add_u32 v4, v2, 2, v3")
    a("v_and_b32 v5, 15, v1")
    a("v_xor_b32 v4, v4, v5")
    a("v_lshlrev_b32 v4, 4, v4")
    a("v_mul_u32_u24 v5, 3584, v3")
    a("v_add_u32 v10, v4, v5")
    a("v_and_b32 v4, 1, v3")
    a("v_lshlrev_b32 v4, 2, v4")
    a("v_and_b32 v5, 7, v1")
    a("v_xor_b32 v4, v4, v5")
    a("v_lshlrev_b32 v4, 4, v4")
    a("v_lshrrev_b32 v5, 3, v1")
    a("v_lshl_add_u32 v11, v5, 10, v4")
    a("s_lshl_b32 s48, s44, 6")
    a("s_lshl_b32 s50, s46, 2")
    a("s_add_u32 s48, s48, s50")
    a("s_mul_i32 s48, s48, 3584")
    a(f"s_add_u32 s48, s48, {hex(HH)}")
    a("s_lshl_b32 s49, s46, 13")
    a("s_lshl_b32 s50, s45, 7")
    a("s_add_u32 s49, s49, s50")
    a("s_lshl_b32 s51, s46, 10")
    a(f"s_add_u32 s47, s51, {5*16384}")
    a("s_lshr_b32 s60, s41, 3")
    a("s_lshl_b32 s60, s60, 1")
    a("s_add_u32 s60, s60, s45")
    a("s_lshl_b32 s60, s60, 1")
    a("s_sub_u32 s61, s60, 14")
    a("s_cmp_ge_u32 s60, 14")
    a("s_cselect_b32 s60, s61, s60")
    a("s_mov_b32 s61, s60")
    a("s_mov_b32 s65, 0")
    srd(a, 28, 8, 1792 * 512 * 2)

    def adv():
        a("s_add_u32 s51, s51, 16384")
        a(f"s_sub_u32 s66, s51, {5*16384}")
        a("s_cmp_ge_u32 s51, s47")
        a("s_cselect_b32 s51, s66, s51")

    def itemA():
        a("s_lshl_b32 s62, s60, 8")
        a("s_add_u32 s62, s62, s48")
        for jj in range(4):
            a(f"s_add_u32 s52, s62, {jj*16*3584}")
            a(f"s_add_u32 m0, s51, {jj*4096}")
            a("buffer_load_dwordx4 v10, s[24:27], s52 offen sc1 lds")
        a("s_add_u32 s60, s60, 1")
        a("s_cmp_eq_u32 s60, 14")
        a("s_cselect_b32 s60, 0, s60")
        adv()

    def itemB():
        a("s_lshl_b32 s63, s61, 17")
        a("s_add_u32 s63, s63, s49")
        for jj in range(4):
            a(f"s_add_u32 s52, s63, {(jj*32)*1024}")
            a(f"s_add_u32 m0, s51, {jj*4096}")
            a("buffer_load_dwordx4 v11, s[28:31], s52 offen lds")
        a("s_add_u32 s61, s61, 1")
        a("s_cmp_eq_u32 s61, 14")
        a("s_cselect_b32 s61, 0, s61")
        adv()

    itemA()
    a("s_branch FL_pair")
    a("FL_loop:")
    a("s_waitcnt vmcnt(4)")
    a("s_barrier")
    a("FL_pair:")
    a.hist = []
    itemB()
    itemA()
    a("s_add_u32 s65, s65, 1")
    a(f"s_cmp_lt_u32 s65, {NKS-1}")
    a("s_cbranch_scc1 FL_loop")
    a("s_waitcnt vmcnt(4)")
    a("s_barrier")
    itemB()
    a("s_waitcnt vmcnt(0)")
    a("s_barrier")
    endpgm(a, 1)
    a("F_compute:")
    a.hist = []
    a("v_and_b32 v4, 15, v0")
    a("v_lshrrev_b32 v5, 4, v0")
    a("v_lshlrev_b32 v6, 3, v4")
    a("v_lshl_add_u32 v18, v5, 12, v6")
    a("s_lshl_b32 s53, s44, 16")
    a("s_lshl_b32 s50, s45, 7")
    a("s_add_u32 s53, s53, s50")
    a("v_lshlrev_b32 v7, 3, v5")
    a("v_lshl_add_u32 v19, v4, 14, v7")
    a("s_lshl_b32 s54, s45, 18")
    a("s_lshl_b32 s55, s44, 7")
    a("s_add_u32 s54, s54, s55")
    a(f"s_add_u32 s54, s54, {hex(ST)}")
    srd(a, 32, 10, 512 * 2)
    srd(a, 36, 6, 2048 * 512 * 2)
    srd(a, 56, 12, 2048 * 512 * 2)
    for jj in range(4):
        a(f"buffer_load_dwordx2 v[{24+2*jj}:{25+2*jj}], v18, s[36:39], s53 offen offset:{1024*jj}")
    a("buffer_load_dwordx2 v[10:11], v6, s[32:35], s50 offen")
    a("v_and_b32 v4, 31, v1")
    a("v_lshrrev_b32 v5, 5, v1")
    a("v_lshl_add_u32 v6, v2, 2, v5")
    a("v_and_b32 v7, 15, v1")
    a("v_xor_b32 v8, v6, v7")
    a("v_lshlrev_b32 v8, 4, v8")
    a("v_lshl_add_u32 v12, v4, 8, v8")
    a("v_xor_b32 v13, 32, v12")
    a("v_bfe_u32 v4, v1, 2, 2")
    a("v_lshl_add_u32 v6, v5, 3, v4")
    a("v_lshl_add_u32 v6, v2, 5, v6")
    a("v_lshlrev_b32 v6, 7, v6")
    a("v_bfe_u32 v7, v1, 4, 1")
    a("v_lshl_add_u32 v6, v7, 5, v6")
    a("v_and_b32 v7, 3, v1")
    a("v_lshl_add_u32 v6, v7, 3, v6")
    a("v_lshrrev_b32 v7, 1, v4")
    a("v_lshl_add_u32 v14, v7, 6, v6")
    a("v_xor_b32 v15, 64, v14")
    for r in range(64, 128, 2):
        a(f"v_mov_b64 v[{r}:{r+1}], 0")
    PW = 16 * 1056
    a("v_and_b32 v4, 31, v1")
    a("v_mul_u32_u24 v6, 528, v5")
    a("v_lshl_add_u32 v4, v4, 4, v6")
    a(f"v_mul_u32_u24 v6, {PW}, v2")
    a("v_add_u32 v16, v4, v6")
    a("v_bfe_u32 v5, v0, 3, 1")
    a("v_lshrrev_b32 v6, 7, v0")
    a("v_lshl_add_u32 v5, v5, 1, v6")
    a("v_bfe_u32 v6, v0, 1, 2")
    a("v_lshl_add_u32 v5, v5, 2, v6")
    a("v_mul_u32_u24 v5, 1056, v5")
    a("v_and_b32 v6, 1, v0")
    a("v_mul_u32_u24 v6, 528, v6")
    a("v_add_u32 v5, v5, v6")
    a("v_bfe_u32 v6, v0, 4, 3")
    a("v_lshl_add_u32 v17, v6, 6, v5")
    a("s_mov_b32 s60, 0")
    a("s_mov_b32 s65, 0")
    ACC = lambda di, mi: 64 + 32 * di + 16 * mi
    XF = lambda s, mi: 32 + 16 * s + 4 * mi
    WF = lambda s, di: 40 + 16 * s + 4 * di
    a("FC_loop:")
    a("s_add_u32 s61, s60, 16384")
    a(f"s_cmp_eq_u32 s61, {5*16384}")
    a("s_cselect_b32 s61, 0, s61")
    for i in range(2):
        a(f"v_add_u32 v{20+i}, s60, v{12+i}")
        a(f"v_add_u32 v{22+i}, s61, v{14+i}")
    a("s_add_u32 s60, s61, 16384")
    a(f"s_cmp_eq_u32 s60, {5*16384}")
    a("s_cselect_b32 s60, 0, s60")
    a("s_barrier")
    if PROF:
        a("s_cmp_lg_u32 s65, 0")
        a("s_cbranch_scc1 FC_nostamp")
        stamp_mid(a, 0, "C")
        a("FC_nostamp:")
    for u in range(2):
        for mi in range(2):
            a(f"ds_read_b128 v[{XF(u,mi)}:{XF(u,mi)+3}], v{20+u} offset:{8192*mi}")
        for di in range(2):
            for hf in range(2):
                a(f"ds_read_b64_tr_b16 v[{WF(u,di)+2*hf}:{WF(u,di)+2*hf+1}], v{22+di} offset:{(16*u+4*hf)*128}")
    a("s_add_u32 s65, s65, 1")
    for u in range(2):
        a(f"s_waitcnt lgkmcnt({6*(1-u)})")
        for di in range(2):
            for mi in range(2):
                c = ACC(di, mi)
                a(f"v_mfma_f32_32x32x16_bf16 v[{c}:{c+15}], v[{WF(u,di)}:{WF(u,di)+3}], v[{XF(u,mi)}:{XF(u,mi)+3}], v[{c}:{c+15}]")
    a(f"s_cmp_lt_u32 s65, {NKS}")
    a("s_cbranch_scc1 FC_loop")
    stamp_mid(a, 1, "C")
    a("s_cmp_lg_u32 s46, 0")
    a("s_cbranch_scc1 FC_go")
    a("v_mov_b32 v4, 0")
    a(f"s_mov_b32 s61, {hex(CNT)}")
    a("FC_poll:")
    a("buffer_load_dword v5, v4, s[24:27], s61 offen sc1")
    a("s_waitcnt vmcnt(0)")
    a("v_readfirstlane_b32 s60, v5")
    a(f"s_cmp_ge_u32 s60, {NCV}")
    a("s_cbranch_scc1 FC_go")
    a("s_sleep 16")
    a("s_branch FC_poll")
    a("FC_go:")
    a("s_barrier")
    a("s_add_u32 s55, s54, 8192")
    a("v_add_u32 v7, 4096, v19")
    a("buffer_load_dwordx2 v[40:41], v19, s[24:27], s54 offen sc1")
    a("buffer_load_dwordx2 v[42:43], v7, s[24:27], s54 offen sc1")
    a("buffer_load_dwordx2 v[44:45], v19, s[24:27], s55 offen sc1")
    a("buffer_load_dwordx2 v[46:47], v7, s[24:27], s55 offen sc1")
    a("s_nop 15")
    a("s_nop 15")
    a("s_nop 15")
    a.hist = []
    for q in range(16):
        a(f"ds_write_b128 v16, v[{64+4*q}:{67+4*q}] offset:{1056*q}")
    for p in range(2):
        a(f"v_lshlrev_b32 v{20+2*p}, 16, v{10+p}")
        a(f"v_and_b32 v{21+2*p}, s64, v{10+p}")
    a("s_waitcnt lgkmcnt(0)")
    a("s_barrier")
    for w in range(4):
        for jj in range(4):
            a(f"ds_read_b128 v[{64+16*w+4*jj}:{67+16*w+4*jj}], v17 offset:{PW*w + 16*jj}")
    a("s_waitcnt vmcnt(0)")
    X = lambda jj, dd: 32 + 4 * jj + dd
    S = lambda jj, dd: 48 + 4 * jj + dd
    for dd in range(4):
        for p in range(2):
            a(f"v_lshlrev_b32 v{S(2*p,dd)}, 16, v{40+2*dd+p}")
            a(f"v_and_b32 v{S(2*p+1,dd)}, s64, v{40+2*dd+p}")
    for jj in range(4):
        for p in range(2):
            a(f"v_lshlrev_b32 v{X(jj,2*p)}, 16, v{24+2*jj+p}")
            a(f"v_and_b32 v{X(jj,2*p+1)}, s64, v{24+2*jj+p}")
    a("s_waitcnt lgkmcnt(8)")
    for j in range(8):
        a(f"v_pk_add_f32 v[{64+2*j}:{65+2*j}], v[{64+2*j}:{65+2*j}], v[{80+2*j}:{81+2*j}]")
    a("s_waitcnt lgkmcnt(0)")
    for j in range(8):
        a(f"v_pk_add_f32 v[{96+2*j}:{97+2*j}], v[{96+2*j}:{97+2*j}], v[{112+2*j}:{113+2*j}]")
    for j in range(8):
        a(f"v_pk_add_f32 v[{64+2*j}:{65+2*j}], v[{64+2*j}:{65+2*j}], v[{96+2*j}:{97+2*j}]")
    O, T = 64, 80

    def rnd(base):
        for j in range(8):
            a(f"v_cvt_pk_bf16_f32 v{T+j}, v{base+2*j}, v{base+2*j+1}")
        for j in range(8):
            a(f"v_lshlrev_b32 v{base+2*j}, 16, v{T+j}")
            a(f"v_and_b32 v{base+2*j+1}, s64, v{T+j}")

    rnd(O)
    for j in range(8):
        a(f"v_pk_add_f32 v[{O+2*j}:{O+2*j+1}], v[{O+2*j}:{O+2*j+1}], v[{20+2*(j&1)}:{21+2*(j&1)}]")
    rnd(O)
    a("s_mov_b32 s60, 0xbfb8aa3b")
    for j in range(8):
        a(f"v_pk_mul_f32 v[{96+2*j}:{97+2*j}], v[{O+2*j}:{O+2*j+1}], s[60:61] op_sel_hi:[1,0]")
    for r in range(16):
        a(f"v_exp_f32 v{96+r}, v{96+r}")
    for j in range(8):
        a(f"v_pk_add_f32 v[{96+2*j}:{97+2*j}], v[{96+2*j}:{97+2*j}], 1.0 op_sel_hi:[1,0]")
    for r in range(16):
        a(f"v_rcp_f32 v{96+r}, v{96+r}")
    for j in range(8):
        a(f"v_pk_mul_f32 v[{O+2*j}:{O+2*j+1}], v[{O+2*j}:{O+2*j+1}], v[{96+2*j}:{97+2*j}]")
    rnd(O)
    for j in range(8):
        a(f"v_pk_mul_f32 v[{O+2*j}:{O+2*j+1}], v[{O+2*j}:{O+2*j+1}], v[{48+2*j}:{49+2*j}]")
    rnd(O)
    for j in range(8):
        a(f"v_pk_add_f32 v[{O+2*j}:{O+2*j+1}], v[{O+2*j}:{O+2*j+1}], v[{32+2*j}:{33+2*j}]")
    for j in range(8):
        a(f"v_cvt_pk_bf16_f32 v{T+j}, v{O+2*j}, v{O+2*j+1}")
    for jj in range(4):
        a(f"buffer_store_dwordx2 v[{T+2*jj}:{T+2*jj+1}], v18, s[56:59], s53 offen offset:{1024*jj}")
    endpgm(a, 1)
    a("F_done:")
    a("s_endpgm")
    return a, f"; @launch kernel=fin_kernel grid=({NCV+NG2},1,1) block=(512,1,1) lds={LDS_FIN}"
```

```python
import sys, os
sys.path.insert(0, os.path.dirname(os.path.abspath(__file__)))
from asmlib import Asm, hexf, f32bits
import math

XN = 0x000000
XT = 0x200000
KR = 0x400000
KRS = 4160
KR2 = 0x1000000
KINV = 0x680000
CNT = 0x6a0000
ST = 0x700000
HH = 0x900000
PROF = int(os.environ.get("PROF", "0"))
WS_USED = 0x3000000 if PROF else 0x1400000
PROFB = 0x2000000

NLN = 128
TS = 2816

DPP = "row_mask:0xf bank_mask:0xf"


def srd(a, d, base, nbytes):
    a(f"s_mov_b32 s{d}, s{base}")
    a(f"s_mov_b32 s{d+1}, s{base+1}")
    a(f"s_mov_b32 s{d+2}, {hex(nbytes)}")
    a(f"s_mov_b32 s{d+3}, 0x00020000")


def reduce_sum(a, regs, tmps):
    for mod in ("quad_perm:[1,0,3,2]", "quad_perm:[2,3,0,1]", "row_half_mirror", "row_mirror"):
        for r in regs:
            a(f"v_add_f32_dpp v{r}, v{r}, v{r} {mod} {DPP}")
    for sw in ("v_permlane16_swap_b32", "v_permlane32_swap_b32"):
        for r, t in zip(regs, tmps):
            a(f"v_mov_b32 v{t}, v{r}")
        for r, t in zip(regs, tmps):
            a(f"{sw} v{r}, v{t}")
        for r, t in zip(regs, tmps):
            a(f"v_add_f32 v{r}, v{r}, v{t}")


def kernel_head(a, name):
    a.raw(f".globl {name}")
    a.raw(".p2align 8")
    a.raw(f".type {name},@function")
    a.raw(f"{name}:")
    a.hist = []


def stamp_start(a):
    if PROF:
        a("s_memrealtime s[90:91]")


def stamp_mid(a, i, *sets):
    if sets and os.environ.get("SS", "C") not in sets:
        return
    if PROF:
        a(f"s_memrealtime s[{92+2*i}:{93+2*i}]")
        a(f"s_memtime s[{96+2*i}:{97+2*i}]")


def endpgm(a, kidx):
    if PROF:
        a("s_waitcnt vmcnt(0)")
        a("s_memrealtime s[88:89]")
        a("s_getreg_b32 s87, hwreg(HW_REG_XCC_ID)")
        a("s_getreg_b32 s86, hwreg(HW_REG_HW_ID)")
        a("s_mov_b64 exec, -1")
        a("s_waitcnt lgkmcnt(0)")
        a("v_mov_b32 v8, s90")
        a("v_mov_b32 v9, s88")
        a("v_mov_b32 v10, s92")
        a("v_mov_b32 v11, s94")
        a("v_mov_b32 v12, s96")
        a("v_mov_b32 v13, s98")
        a("v_mov_b32 v14, s87")
        a("v_mov_b32 v15, s86")
        a("v_lshrrev_b32 v6, 6, v0")
        a("v_lshlrev_b32 v6, 5, v6")
        a("s_lshl_b32 s85, s2, 8")
        a(f"s_add_u32 s85, s85, {hex(PROFB + kidx * 0x100000)}")
        a("buffer_store_dwordx4 v[8:11], v6, s[24:27], s85 offen")
        a("buffer_store_dwordx4 v[12:15], v6, s[24:27], s85 offen offset:16")
    a("s_endpgm")


def kernel_desc(name, nv, ns=102):
    nv = (nv + 7) // 8 * 8
    return f""".p2align 6
.amdhsa_kernel {name}
  .amdhsa_next_free_vgpr {nv}
  .amdhsa_next_free_sgpr {ns}
  .amdhsa_accum_offset {nv}
  .amdhsa_group_segment_fixed_size 0
  .amdhsa_kernarg_size 120
  .amdhsa_user_sgpr_count 2
  .amdhsa_user_sgpr_kernarg_segment_ptr 1
  .amdhsa_system_sgpr_workgroup_id_x 1
.end_amdhsa_kernel
"""


def gen_prep():
    a = Asm()
    kernel_head(a, "prep_kernel")
    a(f"s_cmp_ge_u32 s2, {NLN + 512}")
    a("s_cbranch_scc1 P_done")
    stamp_start(a)
    a("s_load_dwordx2 s[4:5], s[0:1], 0")
    a("s_load_dwordx8 s[68:75], s[0:1], 8")
    a("s_load_dwordx2 s[76:77], s[0:1], 40")
    a("s_load_dwordx2 s[6:7], s[0:1], 112")
    a("v_and_b32 v1, 63, v0")
    a("v_lshrrev_b32 v2, 6, v0")
    a("s_mov_b32 s64, 0xffff0000")
    a("v_lshlrev_b32 v3, 4, v1")
    a("v_lshl_add_u32 v3, v2, 12, v3")
    a("s_lshl_b32 s3, s2, 14")
    a("s_waitcnt lgkmcnt(0)")
    srd(a, 24, 6, WS_USED)
    a(f"s_cmp_ge_u32 s2, {NLN}")
    a("s_cbranch_scc1 P_kgen")
    srd(a, 28, 4, 2048 * 512 * 2)
    a("s_cmp_lg_u32 s2, 0")
    a("s_cbranch_scc1 P_nozero")
    a("v_and_b32 v4, 31, v0")
    a("v_lshlrev_b32 v4, 8, v4")
    a("v_mov_b32 v5, 0")
    a(f"s_mov_b32 s8, {hex(CNT)}")
    a("buffer_store_dword v5, v4, s[24:27], s8 offen sc1")
    a("P_nozero:")
    P = lambda r: 8 + 4 * r
    F = lambda r, e: 24 + 8 * r + e
    S = [56 + 2 * r for r in range(4)]
    T = [57 + 2 * r for r in range(4)]
    Q = [64 + 2 * r for r in range(4)]
    for r in range(4):
        a(f"buffer_load_dwordx4 v[{P(r)}:{P(r)+3}], v3, s[28:31], s3 offen offset:{1024*r}")
    a("v_lshlrev_b32 v4, 2, v2")
    a("v_mul_u32_u24 v4, 1088, v4")
    a("v_lshl_add_u32 v4, v1, 4, v4")
    a("v_bfe_u32 v5, v1, 2, 2")
    a("v_mul_u32_u24 v5, 1088, v5")
    a("v_lshrrev_b32 v6, 4, v1")
    a("v_lshl_add_u32 v5, v6, 5, v5")
    a("v_and_b32 v6, 3, v1")
    a("v_lshl_add_u32 v5, v6, 3, v5")
    a("v_lshl_add_u32 v5, v2, 8, v5")
    a("v_lshlrev_b32 v7, 12, v1")
    a("v_lshl_add_u32 v7, v2, 19, v7")
    a("s_lshl_b32 s8, s2, 5")
    a(f"s_add_u32 s8, s8, {hex(XT)}")
    a("s_add_u32 s9, s8, 0x40000")
    for r in range(4):
        a(f"s_waitcnt vmcnt({3-r})")
        for j in range(4):
            a(f"v_lshlrev_b32 v{F(r,2*j)}, 16, v{P(r)+j}")
            a(f"v_and_b32 v{F(r,2*j+1)}, s64, v{P(r)+j}")
    for r in range(4):
        a(f"v_pk_add_f32 v[72:73], v[{F(r,0)}:{F(r,1)}], v[{F(r,2)}:{F(r,3)}]")
        a(f"v_pk_add_f32 v[74:75], v[{F(r,4)}:{F(r,5)}], v[{F(r,6)}:{F(r,7)}]")
        a(f"v_pk_add_f32 v[72:73], v[72:73], v[74:75]")
        a(f"v_add_f32 v{S[r]}, v72, v73")
    reduce_sum(a, S, T)
    for r in range(4):
        a(f"v_mul_f32 v{S[r]}, {hexf(1/512)}, v{S[r]}")
    for r in range(4):
        sp = S[r] & ~1
        sel = "op_sel_hi:[1,0]" if S[r] == sp else "op_sel:[0,1] op_sel_hi:[1,1]"
        for j in range(4):
            a(f"v_pk_add_f32 v[{72+2*j}:{73+2*j}], v[{F(r,2*j)}:{F(r,2*j+1)}], v[{sp}:{sp+1}] {sel} neg_lo:[0,1] neg_hi:[0,1]")
        a("v_pk_mul_f32 v[80:81], v[72:73], v[72:73]")
        for j in range(1, 4):
            a(f"v_pk_fma_f32 v[80:81], v[{72+2*j}:{73+2*j}], v[{72+2*j}:{73+2*j}], v[80:81]")
        a(f"v_add_f32 v{Q[r]}, v80, v81")
    reduce_sum(a, Q, T)
    for r in range(4):
        a(f"v_mul_f32 v{Q[r]}, {hexf(1/512)}, v{Q[r]}")
    for r in range(4):
        a(f"v_cvt_pk_bf16_f32 v{T[r]}, v{S[r]}, v{Q[r]}")
    for r in range(4):
        a(f"v_lshlrev_b32 v{S[r]}, 16, v{T[r]}")
        a(f"v_and_b32 v{Q[r]}, s64, v{T[r]}")
    for r in range(4):
        a(f"v_add_f32 v{Q[r]}, {hexf(1e-5)}, v{Q[r]}")
    for r in range(4):
        a(f"v_cvt_pk_bf16_f32 v{Q[r]}, v{Q[r]}, v{Q[r]}")
    for r in range(4):
        a(f"v_and_b32 v{Q[r]}, s64, v{Q[r]}")
    for r in range(4):
        a(f"v_sqrt_f32 v{Q[r]}, v{Q[r]}")
    for r in range(4):
        a(f"v_cvt_pk_bf16_f32 v{Q[r]}, v{Q[r]}, v{Q[r]}")
    for r in range(4):
        a(f"v_and_b32 v{Q[r]}, s64, v{Q[r]}")
    for r in range(4):
        a(f"v_rcp_f32 v{Q[r]}, v{Q[r]}")
    a("s_mov_b32 s12, 0x44800000")
    H16 = lambda r: 72 + 4 * r
    for r in range(4):
        sp = S[r] & ~1
        sel = "op_sel_hi:[1,0]" if S[r] == sp else "op_sel:[0,1] op_sel_hi:[1,1]"
        qp = Q[r] & ~1
        for j in range(4):
            a(f"v_pk_add_f32 v[{F(r,2*j)}:{F(r,2*j+1)}], v[{F(r,2*j)}:{F(r,2*j+1)}], v[{sp}:{sp+1}] {sel} neg_lo:[0,1] neg_hi:[0,1]")
        for j in range(4):
            a(f"v_cvt_pk_bf16_f32 v{P(r)+j}, v{F(r,2*j)}, v{F(r,2*j+1)}")
        for j in range(4):
            a(f"v_lshlrev_b32 v{F(r,2*j)}, 16, v{P(r)+j}")
            a(f"v_and_b32 v{F(r,2*j+1)}, s64, v{P(r)+j}")
        for j in range(4):
            a(f"v_pk_mul_f32 v[{F(r,2*j)}:{F(r,2*j+1)}], v[{F(r,2*j)}:{F(r,2*j+1)}], v[{qp}:{qp+1}] {sel}")
        for j in range(4):
            a(f"v_cvt_pk_bf16_f32 v{P(r)+j}, v{F(r,2*j)}, v{F(r,2*j+1)}")
        a(f"buffer_store_dwordx4 v[{P(r)}:{P(r)+3}], v3, s[24:27], s3 offen offset:{1024*r} sc1")
        for j in range(4):
            a(f"v_lshlrev_b32 v{F(r,2*j)}, 16, v{P(r)+j}")
            a(f"v_and_b32 v{F(r,2*j+1)}, s64, v{P(r)+j}")
        for j in range(4):
            a(f"v_pk_mul_f32 v[{F(r,2*j)}:{F(r,2*j+1)}], v[{F(r,2*j)}:{F(r,2*j+1)}], s[12:13] op_sel_hi:[1,0]")
        for j in range(4):
            a(f"v_cvt_pk_f16_f32 v{H16(r)+j}, v{F(r,2*j)}, v{F(r,2*j+1)}")
        a(f"ds_write_b128 v4, v[{H16(r)}:{H16(r)+3}] offset:{1088*r}")
    a("s_waitcnt lgkmcnt(0)")
    a("s_barrier")
    for q in range(2):
        for j in range(4):
            a(f"ds_read_b64_tr_b16 v[{24+8*q+2*j}:{25+8*q+2*j}], v5 offset:{4*j*1088 + 128*q}")
    for q in range(2):
        a(f"s_waitcnt lgkmcnt({4*(1-q)})")
        a(f"buffer_store_dwordx4 v[{24+8*q}:{27+8*q}], v7, s[24:27], s{8+q} offen")
        a(f"buffer_store_dwordx4 v[{28+8*q}:{31+8*q}], v7, s[24:27], s{8+q} offen offset:16")
    endpgm(a, 0)
    a("P_kgen:")
    a.hist = []
    srd(a, 28, 68, 512 * 128 * 2)
    srd(a, 32, 70, 512 * 128 * 2)
    srd(a, 36, 72, 512 * 128 * 2)
    srd(a, 40, 74, 512 * 128 * 2)
    srd(a, 48, 76, 512 * 2)
    a(f"s_sub_u32 s3, s2, {NLN}")
    a("s_lshl_b32 s8, s3, 8")
    a("s_lshl_b32 s9, s3, 1")
    a("v_mov_b32 v5, 0")
    a("buffer_load_ushort v96, v5, s[48:51], s9 offen")
    a("v_lshlrev_b32 v4, 2, v1")
    a("buffer_load_dword v98, v4, s[36:39], s8 offen")
    a("buffer_load_dword v99, v4, s[40:43], s8 offen")
    a("v_lshrrev_b32 v3, 4, v1")
    a("v_lshlrev_b32 v6, 3, v3")
    a("v_lshl_add_u32 v6, v2, 6, v6")
    for ks in range(2):
        for k in range(4):
            a(f"buffer_load_dwordx2 v[{64+8*ks+2*k}:{65+8*ks+2*k}], v6, s[{28+4*k}:{31+4*k}], s8 offen offset:{32*ks}")
    a("s_mov_b32 s60, 0x3fb8aa3b")
    a("s_mov_b32 s62, 0x32a57060")
    a(f"s_mov_b32 s66, {hexf(math.log(2))}")
    a("v_and_b32 v4, 15, v1")
    a("v_lshlrev_b32 v8, 4, v4")
    a("v_mov_b32 v9, v4")
    a("v_lshlrev_b32 v10, 1, v4")
    a("v_add_u32 v10, 256, v10")
    a("v_bfe_u32 v32, v4, 2, 1")
    a("v_lshlrev_b32 v32, 8, v32")
    a("v_and_b32 v33, 3, v4")
    a("v_lshl_add_u32 v32, v33, 2, v32")
    a("v_add_u32 v32, 512, v32")
    a("v_cmp_gt_u32 vcc, 8, v4")
    a("v_cndmask_b32 v10, v32, v10, vcc")
    a("v_lshrrev_b32 v32, 1, v4")
    a("v_lshlrev_b32 v32, 8, v32")
    a("v_and_b32 v33, 1, v4")
    a("v_lshl_add_u32 v32, v33, 3, v32")
    a("v_add_u32 v11, 1024, v32")
    a("v_mov_b32 v33, 2304")
    a("v_cmp_gt_u32 vcc, 9, v4")
    a("v_cndmask_b32 v11, v33, v11, vcc")
    for r in (8, 9, 10, 11):
        a(f"v_cvt_f32_u32 v{r}, v{r}")
    a("v_mov_b32 v30, v11")
    a("v_mov_b32 v28, v10")
    a(f"v_mul_u32_u24 v32, {TS}, v2")
    a("v_lshl_add_u32 v12, v4, 2, v32")
    a("v_lshl_add_u32 v12, v3, 8, v12")
    a("v_mov_b32 v15, 64")
    for t in (1, 2):
        a(f"v_lshrrev_b32 v33, 16, v{9+t}")
        a("v_subrev_u32 v33, 0x4280, v33")
        a(f"v_lshrrev_b32 v34, 23, v{9+t}")
        a("v_subrev_u32 v34, 134, v34")
        a(f"v_lshrrev_b32 v{15+t}, v34, v15")
        a(f"v_mul_u32_u24 v35, v{15+t}, v3")
        a("v_lshl_add_u32 v35, v35, 2, v32")
        a(f"v_lshl_add_u32 v{12+t}, v33, 2, v35")
    a("v_mov_b32 v10, v9")
    for r in range(116, 128, 2):
        a(f"v_mov_b64 v[{r}:{r+1}], 0")
    a("v_lshlrev_b32 v32, 3, v0")
    a("v_sub_u32 v32, 2047, v32")
    for e in range(9):
        a(f"v_subrev_u32 v{18+e}, {e}, v32")
    a("v_max_i32 v26, 0, v26")
    for e in range(9):
        a(f"v_cvt_f32_u32 v{32+e}, v{18+e}")
    for j in range(5):
        a(f"v_cvt_pk_bf16_f32 v{32+2*j}, v{32+2*j}, v{min(33+2*j, 40)}")
    for j in range(5):
        if j < 4:
            a(f"v_lshrrev_b32 v{33+2*j}, 16, v{32+2*j}")
        a(f"v_and_b32 v{32+2*j}, 0xffff, v{32+2*j}")
    for e in range(9):
        a(f"v_subrev_u32 v{32+e}, 0x4280, v{32+e}")
    for e in range(9):
        a(f"v_cmp_gt_u32 vcc, 128, v{18+e}")
        a(f"v_cndmask_b32 v{18+e}, v{32+e}, v{18+e}, vcc")
    for e in range(9):
        a(f"v_lshlrev_b32 v{18+e}, 2, v{18+e}")
    a("s_waitcnt vmcnt(10)")
    a("v_lshlrev_b32 v96, 16, v96")
    a("v_mul_f32 v4, s60, v96")
    a("v_fma_f32 v5, v96, s60, -v4")
    a("v_fma_f32 v5, v96, s62, v5")
    a("v_exp_f32 v4, v4")
    a("v_mul_f32 v5, s66, v5")
    a("v_fma_f32 v96, v4, v5, v4")
    a("v_cvt_pk_bf16_f32 v96, v96, v96")
    a("v_and_b32 v96, s64, v96")
    a("s_waitcnt vmcnt(8)")
    a("v_lshlrev_b32 v4, 16, v98")
    a("v_and_b32 v5, s64, v98")
    a("v_lshlrev_b32 v6, 16, v99")
    a("v_and_b32 v7, s64, v99")
    a("v_add_f32 v4, |v4|, |v5|")
    a("v_add_f32 v6, |v6|, |v7|")
    a("v_add_f32 v98, v4, v6")
    reduce_sum(a, [98], [99])
    a("v_mul_f32 v98, v98, v96")
    a("v_add_f32 v98, v98, v98")
    a("v_lshrrev_b32 v98, 23, v98")
    a("v_sub_u32 v98, 268, v98")
    a("v_min_u32 v98, 240, v98")
    a("v_sub_u32 v99, 244, v98")
    a("v_lshlrev_b32 v99, 23, v99")
    a("v_lshlrev_b32 v98, 23, v98")
    a("v_mul_f32 v98, v98, v96")
    a("v_add_f32 v98, v98, v98")
    a("v_mul_f32 v4, 0xbfb8aa3b, v96")
    a("v_mul_f32 v5, 0.15915494, v96")

    def cexp(preg):
        pp = preg & ~1
        sel = "op_sel_hi:[1,0]" if preg == pp else "op_sel:[0,1] op_sel_hi:[1,1]"
        for u in range(4):
            a(f"v_pk_mul_f32 v[{48+2*u}:{49+2*u}], v[{32+2*u}:{33+2*u}], v[{pp}:{pp+1}] {sel}")
        for u in range(4):
            a(f"v_fract_f32 v{49+2*u}, v{49+2*u}")
        for u in range(4):
            a(f"v_exp_f32 v{48+2*u}, v{48+2*u}")
            a(f"v_cos_f32 v{56+2*u}, v{49+2*u}")
            a(f"v_sin_f32 v{57+2*u}, v{49+2*u}")
        for u in range(4):
            a(f"v_pk_mul_f32 v[{56+2*u}:{57+2*u}], v[{56+2*u}:{57+2*u}], v[{48+2*u}:{49+2*u}] op_sel_hi:[1,0]")

    for ks in range(2):
        R = 64 + 8 * ks
        a(f"s_waitcnt vmcnt({4*(1-ks)})")
        for j in range(2):
            a(f"v_lshlrev_b32 v{48+2*j}, 16, v{R+j}")
            a(f"v_and_b32 v{49+2*j}, s64, v{R+j}")
        for j in range(2):
            a(f"v_pk_mul_f32 v[{52+2*j}:{53+2*j}], v[{48+2*j}:{49+2*j}], s[60:61] op_sel_hi:[1,0]")
        for j in range(2):
            a(f"v_pk_fma_f32 v[{56+2*j}:{57+2*j}], v[{48+2*j}:{49+2*j}], s[60:61], v[{52+2*j}:{53+2*j}] op_sel_hi:[1,0,1] neg_lo:[0,0,1] neg_hi:[0,0,1]")
        for j in range(2):
            a(f"v_pk_fma_f32 v[{56+2*j}:{57+2*j}], v[{48+2*j}:{49+2*j}], s[62:63], v[{56+2*j}:{57+2*j}] op_sel_hi:[1,0,1]")
        for u in range(4):
            a(f"v_exp_f32 v{52+u}, v{52+u}")
        for j in range(2):
            a(f"v_pk_mul_f32 v[{56+2*j}:{57+2*j}], v[{56+2*j}:{57+2*j}], s[66:67] op_sel_hi:[1,0]")
        for j in range(2):
            a(f"v_pk_fma_f32 v[{52+2*j}:{53+2*j}], v[{52+2*j}:{53+2*j}], v[{56+2*j}:{57+2*j}], v[{52+2*j}:{53+2*j}]")
        for j in range(2):
            a(f"v_cvt_pk_bf16_f32 v{48+j}, v{52+2*j}, v{53+2*j}")
        for j in range(2):
            a(f"v_lshlrev_b32 v{32+4*j}, 16, v{48+j}")
            a(f"v_and_b32 v{34+4*j}, s64, v{48+j}")
            a(f"v_lshlrev_b32 v{33+4*j}, 16, v{R+2+j}")
            a(f"v_and_b32 v{35+4*j}, s64, v{R+2+j}")
            a(f"v_lshlrev_b32 v{40+4*j}, 16, v{R+4+j}")
            a(f"v_and_b32 v{42+4*j}, s64, v{R+4+j}")
            a(f"v_lshlrev_b32 v{41+4*j}, 16, v{R+6+j}")
            a(f"v_and_b32 v{43+4*j}, s64, v{R+6+j}")
        for u in range(4):
            a(f"v_pk_mul_f32 v[{32+2*u}:{33+2*u}], v[{32+2*u}:{33+2*u}], v[4:5]")
            a(f"v_pk_mul_f32 v[{40+2*u}:{41+2*u}], v[{40+2*u}:{41+2*u}], v[98:99] op_sel_hi:[1,0]")
        cexp(8)
        for u in range(4):
            a(f"v_pk_mul_f32 v[{100+2*u}:{101+2*u}], v[{56+2*u}:{57+2*u}], v[{40+2*u}:{41+2*u}] op_sel_hi:[1,0] neg_hi:[0,1]")
        for u in range(4):
            a(f"v_fma_f32 v{100+2*u}, -v{41+2*u}, v{57+2*u}, v{100+2*u}")
            a(f"v_fma_f32 v{101+2*u}, -v{41+2*u}, v{56+2*u}, v{101+2*u}")
        for u in range(4):
            a(f"v_cvt_pk_f16_f32 v{108+u}, v{100+2*u}, v{101+2*u}")
        for t in range(3):
            cexp((10, 28, 30)[t])
            for u in range(4):
                a(f"v_cvt_pk_f16_f32 v{112+u}, v{56+2*u}, v{57+2*u}")
            acc = f"v[{116+4*t}:{119+4*t}]"
            a(f"v_mfma_f32_16x16x32_f16 {acc}, v[108:111], v[112:115], {acc}")
    a("v_lshlrev_b32 v4, 2, v0")
    a(f"s_mul_i32 s8, s3, {KRS}")
    a(f"s_add_u32 s12, s8, {hex(KR2)}")
    a(f"s_add_u32 s8, s8, {hex(KR)}")
    a("v_lshlrev_b32 v5, 4, v0")
    a("s_lshl_b32 s9, s3, 2")
    a(f"s_add_u32 s9, s9, {hex(KINV)}")
    for t in range(3):
        for r in range(4):
            a(f"ds_write_b32 v{12+t}, v{116+4*t+r}")
            if r < 3:
                a(f"v_add_u32 v{12+t}, v{12+t}, v{15+t}")
    a("s_waitcnt lgkmcnt(0)")
    a("s_barrier")
    for k in range(3):
        for w in range(4):
            a(f"ds_read_b32 v{32+4*k+w}, v4 offset:{TS*w + 1024*k}")
    a("s_waitcnt lgkmcnt(0)")
    for k in range(3):
        a(f"v_pk_add_f32 v[{32+4*k}:{33+4*k}], v[{32+4*k}:{33+4*k}], v[{34+4*k}:{35+4*k}]")
    for k in range(3):
        a(f"v_add_f32 v{32+4*k}, v{32+4*k}, v{33+4*k}")
    for k in range(3):
        a(f"ds_write_b32 v4, v{32+4*k} offset:{4*TS + 1024*k}")
    a("s_waitcnt lgkmcnt(0)")
    a("s_barrier")
    for e in range(9):
        a(f"ds_read_b32 v{32+e}, v{18+e} offset:{4*TS}")
    a("v_cmp_gt_u32 vcc, 255, v0")
    a("v_mov_b64 v[52:53], 0")
    a("v_mov_b64 v[54:55], 0")
    a("s_waitcnt lgkmcnt(0)")
    a("v_cndmask_b32 v40, 0, v40, vcc")
    for j in range(4):
        a(f"v_cvt_pk_f16_f32 v{44+j}, v{32+2*j}, v{33+2*j}")
        a(f"v_cvt_pk_f16_f32 v{48+j}, v{33+2*j}, v{34+2*j}")
    a("buffer_store_dwordx4 v[44:47], v5, s[24:27], s8 offen sc1")
    a("buffer_store_dwordx4 v[48:51], v5, s[24:27], s12 offen sc1")
    a("v_add_u32 v5, 4096, v5")
    a("v_cmp_gt_u32 vcc, 4, v0")
    a("s_and_saveexec_b64 s[10:11], vcc")
    a("s_cbranch_execz P_done2")
    a("buffer_store_dwordx4 v[52:55], v5, s[24:27], s8 offen")
    a("buffer_store_dwordx4 v[52:55], v5, s[24:27], s12 offen")
    a("buffer_store_dword v99, v52, s[24:27], s9 offen")
    a("P_done2:")
    endpgm(a, 0)
    a("P_done:")
    a("s_endpgm")
    return a


HEADER = """; S4D conv + GELU MLP block, gfx950.  Generated by dev/gen.py
"""


def main():
    out = sys.argv[1] if len(sys.argv) > 1 else "k.s"
    upto = int(sys.argv[2]) if len(sys.argv) > 2 else 3
    ks = []
    launches = []
    a = gen_prep()
    ks.append(("prep_kernel", a))
    launches.append(f"; @launch kernel=prep_kernel grid=({NLN+512},1,1) block=(256,1,1) lds=17408")
    if upto >= 3:
        import gen3
        a, l = gen3.gen_fin()
        ks.append(("fin_kernel", a)); launches.append(l)
    txt = HEADER + "\n".join(launches) + "\n"
    txt += '.amdgcn_target "amdgcn-amd-amdhsa--gfx950"\n.text\n'
    for n, a in ks:
        txt += a.text()
    txt += '.section .rodata,"a"\n'
    for n, a in ks:
        txt += kernel_desc(n, a.maxv + 1)
        print(n, "vgprs", a.maxv + 1, "sgprs", a.maxs + 1, "lines", len(a.lines))
    open(out, "w").write(txt)


if __name__ == "__main__":
    main()
```

```python
import sys, os
sys.path.insert(0, os.path.dirname(os.path.abspath(__file__)))
from asmlib import Asm, hexf, f32bits
import math

XN = 0x000000
XT = 0x200000
KR = 0x400000
KRS = 4160
KR2 = 0x1000000
KINV = 0x680000
CNT = 0x6a0000
ST = 0x700000
HH = 0x900000
PROF = int(os.environ.get("PROF", "0"))
WS_USED = 0x3000000 if PROF else 0x1400000
PROFB = 0x2000000

NLN = 128
TS = 2816

DPP = "row_mask:0xf bank_mask:0xf"


def srd(a, d, base, nbytes):
    a(f"s_mov_b32 s{d}, s{base}")
    a(f"s_mov_b32 s{d+1}, s{base+1}")
    a(f"s_mov_b32 s{d+2}, {hex(nbytes)}")
    a(f"s_mov_b32 s{d+3}, 0x00020000")


def reduce_sum(a, regs, tmps):
    for mod in ("quad_perm:[1,0,3,2]", "quad_perm:[2,3,0,1]", "row_half_mirror", "row_mirror"):
        for r in regs:
            a(f"v_add_f32_dpp v{r}, v{r}, v{r} {mod} {DPP}")
    for sw in ("v_permlane16_swap_b32", "v_permlane32_swap_b32"):
        for r, t in zip(regs, tmps):
            a(f"v_mov_b32 v{t}, v{r}")
        for r, t in zip(regs, tmps):
            a(f"{sw} v{r}, v{t}")
        for r, t in zip(regs, tmps):
            a(f"v_add_f32 v{r}, v{r}, v{t}")


def kernel_head(a, name):
    a.raw(f".globl {name}")
    a.raw(".p2align 8")
    a.raw(f".type {name},@function")
    a.raw(f"{name}:")
    a.hist = []


DIAG = int(os.environ.get("DIAG", "0"))


def stamp_start(a):
    if PROF or DIAG:
        a("s_memrealtime s[90:91]")


def stamp_mid(a, i, *sets):
    if sets and os.environ.get("SS", "C") not in sets:
        return
    if PROF:
        a(f"s_memrealtime s[{92+2*i}:{93+2*i}]")
        a(f"s_memtime s[{96+2*i}:{97+2*i}]")


def endpgm(a, kidx):
    if DIAG:
        a("s_waitcnt vmcnt(0)")
        a("s_memrealtime s[88:89]")
        a("s_load_dwordx2 s[80:81], s[0:1], 104")
        a("s_mov_b64 exec, 1")
        a("v_mov_b32 v8, 0")
        a(f"s_mov_b32 s85, {hex(CNT + 31*256 + 64)}")
        a("s_waitcnt lgkmcnt(0)")
        if kidx == 0:
            a("s_cmp_lg_u32 s2, 0")
            a(f"s_cbranch_scc1 DG_skip{len(a.lines)}")
            lbl = f"DG_skip{len(a.lines)-1}"
            a("v_mov_b32 v9, s90")
            a("buffer_store_dword v9, v8, s[24:27], s85 offen sc1")
            a("v_mov_b32 v9, s88")
            a("buffer_store_dword v9, v8, s[24:27], s85 offen offset:4 sc1")
            a(lbl + ":")
        else:
            a("s_mov_b32 s82, 256")
            a("s_mov_b32 s83, 0x00020000")
            a("buffer_load_dword v10, v8, s[24:27], s85 offen sc1")
            a("s_waitcnt vmcnt(0)")
            a("v_sub_u32 v9, s88, v10")
            a("buffer_atomic_umax v9, v8, s[80:83], 0 offen offset:4 sc1")
            a("v_sub_u32 v9, s90, v10")
            a("buffer_atomic_umax v9, v8, s[80:83], 0 offen offset:8 sc1")
            a("v_sub_u32 v9, v10, s90")
            a("buffer_atomic_umax v9, v8, s[80:83], 0 offen offset:12 sc1")
    if PROF:
        a("s_waitcnt vmcnt(0)")
        a("s_memrealtime s[88:89]")
        a("s_getreg_b32 s87, hwreg(HW_REG_XCC_ID)")
        a("s_getreg_b32 s86, hwreg(HW_REG_HW_ID)")
        a("s_mov_b64 exec, -1")
        a("s_waitcnt lgkmcnt(0)")
        a("v_mov_b32 v8, s90")
        a("v_mov_b32 v9, s88")
        a("v_mov_b32 v10, s92")
        a("v_mov_b32 v11, s94")
        a("v_mov_b32 v12, s96")
        a("v_mov_b32 v13, s98")
        a("v_mov_b32 v14, s87")
        a("v_mov_b32 v15, s86")
        a("v_lshrrev_b32 v6, 6, v0")
        a("v_lshlrev_b32 v6, 5, v6")
        a("s_lshl_b32 s85, s2, 8")
        a(f"s_add_u32 s85, s85, {hex(PROFB + kidx * 0x100000)}")
        a("buffer_store_dwordx4 v[8:11], v6, s[24:27], s85 offen")
        a("buffer_store_dwordx4 v[12:15], v6, s[24:27], s85 offen offset:16")
    a("s_endpgm")


def kernel_desc(name, nv, ns=102):
    nv = (nv + 7) // 8 * 8
    return f""".p2align 6
.amdhsa_kernel {name}
  .amdhsa_next_free_vgpr {nv}
  .amdhsa_next_free_sgpr {ns}
  .amdhsa_accum_offset {nv}
  .amdhsa_group_segment_fixed_size 0
  .amdhsa_kernarg_size 120
  .amdhsa_user_sgpr_count 2
  .amdhsa_user_sgpr_kernarg_segment_ptr 1
  .amdhsa_system_sgpr_workgroup_id_x 1
.end_amdhsa_kernel
"""


def gen_prep():
    a = Asm()
    kernel_head(a, "prep_kernel")
    a(f"s_cmp_ge_u32 s2, {NLN + 512}")
    a("s_cbranch_scc1 P_done")
    stamp_start(a)
    a("s_load_dwordx2 s[4:5], s[0:1], 0")
    a("s_load_dwordx8 s[68:75], s[0:1], 8")
    a("s_load_dwordx2 s[76:77], s[0:1], 40")
    a("s_load_dwordx2 s[6:7], s[0:1], 112")
    a("v_and_b32 v1, 63, v0")
    a("v_lshrrev_b32 v2, 6, v0")
    a("s_mov_b32 s64, 0xffff0000")
    a("v_lshlrev_b32 v3, 4, v1")
    a("v_lshl_add_u32 v3, v2, 12, v3")
    a("s_lshl_b32 s3, s2, 14")
    a("s_waitcnt lgkmcnt(0)")
    srd(a, 24, 6, WS_USED)
    a(f"s_cmp_ge_u32 s2, {NLN}")
    a("s_cbranch_scc1 P_kgen")
    srd(a, 28, 4, 2048 * 512 * 2)
    a("s_cmp_lg_u32 s2, 0")
    a("s_cbranch_scc1 P_nozero")
    a("v_and_b32 v4, 31, v0")
    a("v_lshlrev_b32 v4, 8, v4")
    a("v_mov_b32 v5, 0")
    a(f"s_mov_b32 s8, {hex(CNT)}")
    a("buffer_store_dword v5, v4, s[24:27], s8 offen sc1")
    a("P_nozero:")
    P = lambda r: 8 + 4 * r
    F = lambda r, e: 24 + 8 * r + e
    S = [56 + 2 * r for r in range(4)]
    T = [57 + 2 * r for r in range(4)]
    Q = [64 + 2 * r for r in range(4)]
    for r in range(4):
        a(f"buffer_load_dwordx4 v[{P(r)}:{P(r)+3}], v3, s[28:31], s3 offen offset:{1024*r}")
    a("v_lshlrev_b32 v4, 2, v2")
    a("v_mul_u32_u24 v4, 1088, v4")
    a("v_lshl_add_u32 v4, v1, 4, v4")
    a("v_bfe_u32 v5, v1, 2, 2")
    a("v_mul_u32_u24 v5, 1088, v5")
    a("v_lshrrev_b32 v6, 4, v1")
    a("v_lshl_add_u32 v5, v6, 5, v5")
    a("v_and_b32 v6, 3, v1")
    a("v_lshl_add_u32 v5, v6, 3, v5")
    a("v_lshl_add_u32 v5, v2, 8, v5")
    a("v_lshlrev_b32 v7, 12, v1")
    a("v_lshl_add_u32 v7, v2, 19, v7")
    a("s_lshl_b32 s8, s2, 5")
    a(f"s_add_u32 s8, s8, {hex(XT)}")
    a("s_add_u32 s9, s8, 0x40000")
    for r in range(4):
        a(f"s_waitcnt vmcnt({3-r})")
        for j in range(4):
            a(f"v_lshlrev_b32 v{F(r,2*j)}, 16, v{P(r)+j}")
            a(f"v_and_b32 v{F(r,2*j+1)}, s64, v{P(r)+j}")
    for r in range(4):
        a(f"v_pk_add_f32 v[72:73], v[{F(r,0)}:{F(r,1)}], v[{F(r,2)}:{F(r,3)}]")
        a(f"v_pk_add_f32 v[74:75], v[{F(r,4)}:{F(r,5)}], v[{F(r,6)}:{F(r,7)}]")
        a(f"v_pk_add_f32 v[72:73], v[72:73], v[74:75]")
        a(f"v_add_f32 v{S[r]}, v72, v73")
    reduce_sum(a, S, T)
    for r in range(4):
        a(f"v_mul_f32 v{S[r]}, {hexf(1/512)}, v{S[r]}")
    for r in range(4):
        sp = S[r] & ~1
        sel = "op_sel_hi:[1,0]" if S[r] == sp else "op_sel:[0,1] op_sel_hi:[1,1]"
        for j in range(4):
            a(f"v_pk_add_f32 v[{72+2*j}:{73+2*j}], v[{F(r,2*j)}:{F(r,2*j+1)}], v[{sp}:{sp+1}] {sel} neg_lo:[0,1] neg_hi:[0,1]")
        a("v_pk_mul_f32 v[80:81], v[72:73], v[72:73]")
        for j in range(1, 4):
            a(f"v_pk_fma_f32 v[80:81], v[{72+2*j}:{73+2*j}], v[{72+2*j}:{73+2*j}], v[80:81]")
        a(f"v_add_f32 v{Q[r]}, v80, v81")
    reduce_sum(a, Q, T)
    for r in range(4):
        a(f"v_mul_f32 v{Q[r]}, {hexf(1/512)}, v{Q[r]}")
    for r in range(4):
        a(f"v_cvt_pk_bf16_f32 v{T[r]}, v{S[r]}, v{Q[r]}")
    for r in range(4):
        a(f"v_lshlrev_b32 v{S[r]}, 16, v{T[r]}")
        a(f"v_and_b32 v{Q[r]}, s64, v{T[r]}")
    for r in range(4):
        a(f"v_add_f32 v{Q[r]}, {hexf(1e-5)}, v{Q[r]}")
    for r in range(4):
        a(f"v_cvt_pk_bf16_f32 v{Q[r]}, v{Q[r]}, v{Q[r]}")
    for r in range(4):
        a(f"v_and_b32 v{Q[r]}, s64, v{Q[r]}")
    for r in range(4):
        a(f"v_sqrt_f32 v{Q[r]}, v{Q[r]}")
    for r in range(4):
        a(f"v_cvt_pk_bf16_f32 v{Q[r]}, v{Q[r]}, v{Q[r]}")
    for r in range(4):
        a(f"v_and_b32 v{Q[r]}, s64, v{Q[r]}")
    for r in range(4):
        a(f"v_rcp_f32 v{Q[r]}, v{Q[r]}")
    a("s_mov_b32 s12, 0x44800000")
    H16 = lambda r: 72 + 4 * r
    for r in range(4):
        sp = S[r] & ~1
        sel = "op_sel_hi:[1,0]" if S[r] == sp else "op_sel:[0,1] op_sel_hi:[1,1]"
        qp = Q[r] & ~1
        for j in range(4):
            a(f"v_pk_add_f32 v[{F(r,2*j)}:{F(r,2*j+1)}], v[{F(r,2*j)}:{F(r,2*j+1)}], v[{sp}:{sp+1}] {sel} neg_lo:[0,1] neg_hi:[0,1]")
        for j in range(4):
            a(f"v_cvt_pk_bf16_f32 v{P(r)+j}, v{F(r,2*j)}, v{F(r,2*j+1)}")
        for j in range(4):
            a(f"v_lshlrev_b32 v{F(r,2*j)}, 16, v{P(r)+j}")
            a(f"v_and_b32 v{F(r,2*j+1)}, s64, v{P(r)+j}")
        for j in range(4):
            a(f"v_pk_mul_f32 v[{F(r,2*j)}:{F(r,2*j+1)}], v[{F(r,2*j)}:{F(r,2*j+1)}], v[{qp}:{qp+1}] {sel}")
        for j in range(4):
            a(f"v_cvt_pk_bf16_f32 v{P(r)+j}, v{F(r,2*j)}, v{F(r,2*j+1)}")
        a(f"buffer_store_dwordx4 v[{P(r)}:{P(r)+3}], v3, s[24:27], s3 offen offset:{1024*r} sc1")
        for j in range(4):
            a(f"v_lshlrev_b32 v{F(r,2*j)}, 16, v{P(r)+j}")
            a(f"v_and_b32 v{F(r,2*j+1)}, s64, v{P(r)+j}")
        for j in range(4):
            a(f"v_pk_mul_f32 v[{F(r,2*j)}:{F(r,2*j+1)}], v[{F(r,2*j)}:{F(r,2*j+1)}], s[12:13] op_sel_hi:[1,0]")
        for j in range(4):
            a(f"v_cvt_pk_f16_f32 v{H16(r)+j}, v{F(r,2*j)}, v{F(r,2*j+1)}")
        a(f"ds_write_b128 v4, v[{H16(r)}:{H16(r)+3}] offset:{1088*r}")
    a("s_waitcnt lgkmcnt(0)")
    a("s_barrier")
    for q in range(2):
        for j in range(4):
            a(f"ds_read_b64_tr_b16 v[{24+8*q+2*j}:{25+8*q+2*j}], v5 offset:{4*j*1088 + 128*q}")
    for q in range(2):
        a(f"s_waitcnt lgkmcnt({4*(1-q)})")
        a(f"buffer_store_dwordx4 v[{24+8*q}:{27+8*q}], v7, s[24:27], s{8+q} offen")
        a(f"buffer_store_dwordx4 v[{28+8*q}:{31+8*q}], v7, s[24:27], s{8+q} offen offset:16")
    endpgm(a, 0)
    a("P_kgen:")
    a.hist = []
    srd(a, 28, 68, 512 * 128 * 2)
    srd(a, 32, 70, 512 * 128 * 2)
    srd(a, 36, 72, 512 * 128 * 2)
    srd(a, 40, 74, 512 * 128 * 2)
    srd(a, 48, 76, 512 * 2)
    a(f"s_sub_u32 s3, s2, {NLN}")
    a("s_lshl_b32 s8, s3, 8")
    a("s_lshl_b32 s9, s3, 1")
    a("v_mov_b32 v5, 0")
    a("buffer_load_ushort v96, v5, s[48:51], s9 offen")
    a("v_lshlrev_b32 v4, 2, v1")
    a("buffer_load_dword v98, v4, s[36:39], s8 offen")
    a("buffer_load_dword v99, v4, s[40:43], s8 offen")
    a("v_lshrrev_b32 v3, 4, v1")
    a("v_lshlrev_b32 v6, 3, v3")
    a("v_lshl_add_u32 v6, v2, 6, v6")
    for ks in range(2):
        for k in range(4):
            a(f"buffer_load_dwordx2 v[{64+8*ks+2*k}:{65+8*ks+2*k}], v6, s[{28+4*k}:{31+4*k}], s8 offen offset:{32*ks}")
    a("s_mov_b32 s60, 0x3fb8aa3b")
    a("s_mov_b32 s62, 0x32a57060")
    a(f"s_mov_b32 s66, {hexf(math.log(2))}")
    a("v_and_b32 v4, 15, v1")
    a("v_lshlrev_b32 v8, 4, v4")
    a("v_mov_b32 v9, v4")
    a("v_lshlrev_b32 v10, 1, v4")
    a("v_add_u32 v10, 256, v10")
    a("v_bfe_u32 v32, v4, 2, 1")
    a("v_lshlrev_b32 v32, 8, v32")
    a("v_and_b32 v33, 3, v4")
    a("v_lshl_add_u32 v32, v33, 2, v32")
    a("v_add_u32 v32, 512, v32")
    a("v_cmp_gt_u32 vcc, 8, v4")
    a("v_cndmask_b32 v10, v32, v10, vcc")
    a("v_lshrrev_b32 v32, 1, v4")
    a("v_lshlrev_b32 v32, 8, v32")
    a("v_and_b32 v33, 1, v4")
    a("v_lshl_add_u32 v32, v33, 3, v32")
    a("v_add_u32 v11, 1024, v32")
    a("v_mov_b32 v33, 2304")
    a("v_cmp_gt_u32 vcc, 9, v4")
    a("v_cndmask_b32 v11, v33, v11, vcc")
    for r in (8, 9, 10, 11):
        a(f"v_cvt_f32_u32 v{r}, v{r}")
    a("v_mov_b32 v30, v11")
    a("v_mov_b32 v28, v10")
    a(f"v_mul_u32_u24 v32, {TS}, v2")
    a("v_lshl_add_u32 v12, v4, 2, v32")
    a("v_lshl_add_u32 v12, v3, 8, v12")
    a("v_mov_b32 v15, 64")
    for t in (1, 2):
        a(f"v_lshrrev_b32 v33, 16, v{9+t}")
        a("v_subrev_u32 v33, 0x4280, v33")
        a(f"v_lshrrev_b32 v34, 23, v{9+t}")
        a("v_subrev_u32 v34, 134, v34")
        a(f"v_lshrrev_b32 v{15+t}, v34, v15")
        a(f"v_mul_u32_u24 v35, v{15+t}, v3")
        a("v_lshl_add_u32 v35, v35, 2, v32")
        a(f"v_lshl_add_u32 v{12+t}, v33, 2, v35")
    a("v_mov_b32 v10, v9")
    for r in range(116, 128, 2):
        a(f"v_mov_b64 v[{r}:{r+1}], 0")
    a("v_lshlrev_b32 v32, 3, v0")
    a("v_sub_u32 v32, 2047, v32")
    for e in range(9):
        a(f"v_subrev_u32 v{18+e}, {e}, v32")
    a("v_max_i32 v26, 0, v26")
    for e in range(9):
        a(f"v_cvt_f32_u32 v{32+e}, v{18+e}")
    for j in range(5):
        a(f"v_cvt_pk_bf16_f32 v{32+2*j}, v{32+2*j}, v{min(33+2*j, 40)}")
    for j in range(5):
        if j < 4:
            a(f"v_lshrrev_b32 v{33+2*j}, 16, v{32+2*j}")
        a(f"v_and_b32 v{32+2*j}, 0xffff, v{32+2*j}")
    for e in range(9):
        a(f"v_subrev_u32 v{32+e}, 0x4280, v{32+e}")
    for e in range(9):
        a(f"v_cmp_gt_u32 vcc, 128, v{18+e}")
        a(f"v_cndmask_b32 v{18+e}, v{32+e}, v{18+e}, vcc")
    for e in range(9):
        a(f"v_lshlrev_b32 v{18+e}, 2, v{18+e}")
    a("s_waitcnt vmcnt(10)")
    a("v_lshlrev_b32 v96, 16, v96")
    a("v_mul_f32 v4, s60, v96")
    a("v_fma_f32 v5, v96, s60, -v4")
    a("v_fma_f32 v5, v96, s62, v5")
    a("v_exp_f32 v4, v4")
    a("v_mul_f32 v5, s66, v5")
    a("v_fma_f32 v96, v4, v5, v4")
    a("v_cvt_pk_bf16_f32 v96, v96, v96")
    a("v_and_b32 v96, s64, v96")
    a("s_waitcnt vmcnt(8)")
    a("v_lshlrev_b32 v4, 16, v98")
    a("v_and_b32 v5, s64, v98")
    a("v_lshlrev_b32 v6, 16, v99")
    a("v_and_b32 v7, s64, v99")
    a("v_add_f32 v4, |v4|, |v5|")
    a("v_add_f32 v6, |v6|, |v7|")
    a("v_add_f32 v98, v4, v6")
    reduce_sum(a, [98], [99])
    a("v_mul_f32 v98, v98, v96")
    a("v_add_f32 v98, v98, v98")
    a("v_lshrrev_b32 v98, 23, v98")
    a("v_sub_u32 v98, 268, v98")
    a("v_min_u32 v98, 240, v98")
    a("v_sub_u32 v99, 244, v98")
    a("v_lshlrev_b32 v99, 23, v99")
    a("v_lshlrev_b32 v98, 23, v98")
    a("v_mul_f32 v98, v98, v96")
    a("v_add_f32 v98, v98, v98")
    a("v_mul_f32 v4, 0xbfb8aa3b, v96")
    a("v_mul_f32 v5, 0.15915494, v96")

    def cexp(preg):
        pp = preg & ~1
        sel = "op_sel_hi:[1,0]" if preg == pp else "op_sel:[0,1] op_sel_hi:[1,1]"
        for u in range(4):
            a(f"v_pk_mul_f32 v[{48+2*u}:{49+2*u}], v[{32+2*u}:{33+2*u}], v[{pp}:{pp+1}] {sel}")
        for u in range(4):
            a(f"v_fract_f32 v{49+2*u}, v{49+2*u}")
        for u in range(4):
            a(f"v_exp_f32 v{48+2*u}, v{48+2*u}")
            a(f"v_cos_f32 v{56+2*u}, v{49+2*u}")
            a(f"v_sin_f32 v{57+2*u}, v{49+2*u}")
        for u in range(4):
            a(f"v_pk_mul_f32 v[{56+2*u}:{57+2*u}], v[{56+2*u}:{57+2*u}], v[{48+2*u}:{49+2*u}] op_sel_hi:[1,0]")

    for ks in range(2):
        R = 64 + 8 * ks
        a(f"s_waitcnt vmcnt({4*(1-ks)})")
        for j in range(2):
            a(f"v_lshlrev_b32 v{48+2*j}, 16, v{R+j}")
            a(f"v_and_b32 v{49+2*j}, s64, v{R+j}")
        for j in range(2):
            a(f"v_pk_mul_f32 v[{52+2*j}:{53+2*j}], v[{48+2*j}:{49+2*j}], s[60:61] op_sel_hi:[1,0]")
        for j in range(2):
            a(f"v_pk_fma_f32 v[{56+2*j}:{57+2*j}], v[{48+2*j}:{49+2*j}], s[60:61], v[{52+2*j}:{53+2*j}] op_sel_hi:[1,0,1] neg_lo:[0,0,1] neg_hi:[0,0,1]")
        for j in range(2):
            a(f"v_pk_fma_f32 v[{56+2*j}:{57+2*j}], v[{48+2*j}:{49+2*j}], s[62:63], v[{56+2*j}:{57+2*j}] op_sel_hi:[1,0,1]")
        for u in range(4):
            a(f"v_exp_f32 v{52+u}, v{52+u}")
        for j in range(2):
            a(f"v_pk_mul_f32 v[{56+2*j}:{57+2*j}], v[{56+2*j}:{57+2*j}], s[66:67] op_sel_hi:[1,0]")
        for j in range(2):
            a(f"v_pk_fma_f32 v[{52+2*j}:{53+2*j}], v[{52+2*j}:{53+2*j}], v[{56+2*j}:{57+2*j}], v[{52+2*j}:{53+2*j}]")
        for j in range(2):
            a(f"v_cvt_pk_bf16_f32 v{48+j}, v{52+2*j}, v{53+2*j}")
        for j in range(2):
            a(f"v_lshlrev_b32 v{32+4*j}, 16, v{48+j}")
            a(f"v_and_b32 v{34+4*j}, s64, v{48+j}")
            a(f"v_lshlrev_b32 v{33+4*j}, 16, v{R+2+j}")
            a(f"v_and_b32 v{35+4*j}, s64, v{R+2+j}")
            a(f"v_lshlrev_b32 v{40+4*j}, 16, v{R+4+j}")
            a(f"v_and_b32 v{42+4*j}, s64, v{R+4+j}")
            a(f"v_lshlrev_b32 v{41+4*j}, 16, v{R+6+j}")
            a(f"v_and_b32 v{43+4*j}, s64, v{R+6+j}")
        for u in range(4):
            a(f"v_pk_mul_f32 v[{32+2*u}:{33+2*u}], v[{32+2*u}:{33+2*u}], v[4:5]")
            a(f"v_pk_mul_f32 v[{40+2*u}:{41+2*u}], v[{40+2*u}:{41+2*u}], v[98:99] op_sel_hi:[1,0]")
        cexp(8)
        for u in range(4):
            a(f"v_pk_mul_f32 v[{100+2*u}:{101+2*u}], v[{56+2*u}:{57+2*u}], v[{40+2*u}:{41+2*u}] op_sel_hi:[1,0] neg_hi:[0,1]")
        for u in range(4):
            a(f"v_fma_f32 v{100+2*u}, -v{41+2*u}, v{57+2*u}, v{100+2*u}")
            a(f"v_fma_f32 v{101+2*u}, -v{41+2*u}, v{56+2*u}, v{101+2*u}")
        for u in range(4):
            a(f"v_cvt_pk_f16_f32 v{108+u}, v{100+2*u}, v{101+2*u}")
        for t in range(3):
            cexp((10, 28, 30)[t])
            for u in range(4):
                a(f"v_cvt_pk_f16_f32 v{112+u}, v{56+2*u}, v{57+2*u}")
            acc = f"v[{116+4*t}:{119+4*t}]"
            a(f"v_mfma_f32_16x16x32_f16 {acc}, v[108:111], v[112:115], {acc}")
    a("v_lshlrev_b32 v4, 2, v0")
    a(f"s_mul_i32 s8, s3, {KRS}")
    a(f"s_add_u32 s12, s8, {hex(KR2)}")
    a(f"s_add_u32 s8, s8, {hex(KR)}")
    a("v_lshlrev_b32 v5, 4, v0")
    a("s_lshl_b32 s9, s3, 2")
    a(f"s_add_u32 s9, s9, {hex(KINV)}")
    for t in range(3):
        for r in range(4):
            a(f"ds_write_b32 v{12+t}, v{116+4*t+r}")
            if r < 3:
                a(f"v_add_u32 v{12+t}, v{12+t}, v{15+t}")
    a("s_waitcnt lgkmcnt(0)")
    a("s_barrier")
    for k in range(3):
        for w in range(4):
            a(f"ds_read_b32 v{32+4*k+w}, v4 offset:{TS*w + 1024*k}")
    a("s_waitcnt lgkmcnt(0)")
    for k in range(3):
        a(f"v_pk_add_f32 v[{32+4*k}:{33+4*k}], v[{32+4*k}:{33+4*k}], v[{34+4*k}:{35+4*k}]")
    for k in range(3):
        a(f"v_add_f32 v{32+4*k}, v{32+4*k}, v{33+4*k}")
    for k in range(3):
        a(f"ds_write_b32 v4, v{32+4*k} offset:{4*TS + 1024*k}")
    a("s_waitcnt lgkmcnt(0)")
    a("s_barrier")
    for e in range(9):
        a(f"ds_read_b32 v{32+e}, v{18+e} offset:{4*TS}")
    a("v_cmp_gt_u32 vcc, 255, v0")
    a("v_mov_b64 v[52:53], 0")
    a("v_mov_b64 v[54:55], 0")
    a("s_waitcnt lgkmcnt(0)")
    a("v_cndmask_b32 v40, 0, v40, vcc")
    for j in range(4):
        a(f"v_cvt_pk_f16_f32 v{44+j}, v{32+2*j}, v{33+2*j}")
        a(f"v_cvt_pk_f16_f32 v{48+j}, v{33+2*j}, v{34+2*j}")
    a("buffer_store_dwordx4 v[44:47], v5, s[24:27], s8 offen sc1")
    a("buffer_store_dwordx4 v[48:51], v5, s[24:27], s12 offen sc1")
    a("v_add_u32 v5, 4096, v5")
    a("v_cmp_gt_u32 vcc, 4, v0")
    a("s_and_saveexec_b64 s[10:11], vcc")
    a("s_cbranch_execz P_done2")
    a("buffer_store_dwordx4 v[52:55], v5, s[24:27], s8 offen")
    a("buffer_store_dwordx4 v[52:55], v5, s[24:27], s12 offen")
    a("buffer_store_dword v99, v52, s[24:27], s9 offen")
    a("P_done2:")
    endpgm(a, 0)
    a("P_done:")
    a("s_endpgm")
    return a


HEADER = """; S4D conv + GELU MLP block, gfx950.  Generated by dev/gen.py
"""


def main():
    out = sys.argv[1] if len(sys.argv) > 1 else "k.s"
    upto = int(sys.argv[2]) if len(sys.argv) > 2 else 3
    ks = []
    launches = []
    if upto >= 3:
        import gen3
        a, l = gen3.gen_fin()
        ks.append(("fin_kernel", a)); launches.append(l)
    txt = HEADER + "\n".join(launches) + "\n"
    txt += '.amdgcn_target "amdgcn-amd-amdhsa--gfx950"\n.text\n'
    for n, a in ks:
        txt += a.text()
    txt += '.section .rodata,"a"\n'
    for n, a in ks:
        txt += kernel_desc(n, a.maxv + 1)
        print(n, "vgprs", a.maxv + 1, "sgprs", a.maxs + 1, "lines", len(a.lines))
    open(out, "w").write(txt)


if __name__ == "__main__":
    main()
```

```python
from asmlib import Asm, hexf
from gen import *
import math

NG1 = 224
NKG = 0
LDS_MID = 81920


def epi_setup(a):
    a("v_lshrrev_b32 v5, 5, v1")
    a("v_lshrrev_b32 v6, 1, v2")
    a("v_lshlrev_b32 v3, 7, v6")
    a("v_lshl_add_u32 v3, v5, 3, v3")
    a("s_lshl_b32 s50, s45, 8")
    a("s_lshl_b32 s53, s67, 6")
    a("s_add_u32 s53, s53, s50")
    for qq in range(4):
        a(f"buffer_load_dwordx2 v[{24+2*qq}:{25+2*qq}], v3, s[32:35], s53 offen offset:{16*qq}")
    a("v_lshl_add_u32 v7, v6, 3, v5")
    a("s_lshl_b32 s53, s67, 2")
    a("v_add_u32 v7, s53, v7")
    a("v_and_b32 v9, 15, v1")
    a("v_xor_b32 v7, v7, v9")
    a("v_lshlrev_b32 v7, 4, v7")
    a("v_and_b32 v10, 31, v1")
    a("v_and_b32 v11, 1, v2")
    a("v_lshl_add_u32 v10, v11, 6, v10")
    a("v_lshl_add_u32 v10, v10, 8, v7")
    a("v_add_u32 v10, 49152, v10")
    a("v_xor_b32 v11, 32, v10")
    a("v_add_u32 v7, s53, v2")
    a("v_lshrrev_b32 v13, 4, v1")
    a("v_xor_b32 v12, v9, v13")
    a("v_lshlrev_b32 v12, 4, v12")
    a("v_lshl_add_u32 v13, v7, 4, v13")
    a("v_lshl_add_u32 v12, v13, 8, v12")
    a("v_add_u32 v12, 49152, v12")
    a("v_mul_u32_u24 v13, 3584, v13")
    a("v_lshl_add_u32 v13, v9, 4, v13")
    a("s_mul_i32 s52, s44, 128*3584")
    a("s_add_u32 s52, s52, s50")
    a(f"s_add_u32 s52, s52, {hex(HH)}")
    c0 = -2.0 * math.sqrt(2.0 / math.pi) * math.log2(math.e)
    a(f"s_mov_b32 s54, {hexf(c0 * 0.044715)}")
    a(f"v_mov_b32 v8, {hexf(c0)}")


def gen_gemm1(a):
    a("s_and_b32 s40, s2, 7")
    a("s_lshr_b32 s41, s2, 3")
    a("s_mul_i32 s42, s41, 37")
    a("s_lshr_b32 s42, s42, 8")
    a("s_mul_i32 s43, s42, 7")
    a("s_sub_u32 s43, s41, s43")
    a("s_lshr_b32 s44, s40, 1")
    a("s_lshl_b32 s44, s44, 2")
    a("s_add_u32 s44, s44, s42")
    a("s_and_b32 s45, s40, 1")
    a("s_mul_i32 s45, s45, 7")
    a("s_add_u32 s45, s45, s43")
    a("s_cmp_lg_u32 s46, 0")
    a("s_cbranch_scc1 G1_go")
    a("s_lshl_b32 s50, s44, 8")
    a(f"s_add_u32 s50, s50, {hex(CNT + 17*256)}")
    a("v_mov_b32 v4, 0")
    a("G1_poll:")
    a("buffer_load_dword v5, v4, s[24:27], s50 offen sc1")
    a("s_waitcnt vmcnt(0)")
    a("v_readfirstlane_b32 s52, v5")
    a("s_cmp_ge_u32 s52, 16")
    a("s_cbranch_scc1 G1_go")
    a("s_sleep 8")
    a("s_branch G1_poll")
    a("G1_go:")
    a.hist = []
    a("s_barrier")
    a("s_cmp_lt_u32 s46, 4")
    a("s_cbranch_scc1 G1_compute")
    a("s_sub_u32 s46, s46, 4")
    a("v_and_b32 v2, 3, v2")
    a("v_lshrrev_b32 v3, 4, v1")
    a("v_and_b32 v4, 1, v2")
    a("v_lshl_add_u32 v4, v4, 2, v3")
    a("v_and_b32 v5, 7, v1")
    a("v_xor_b32 v4, v4, v5")
    a("v_lshlrev_b32 v4, 4, v4")
    a("v_lshrrev_b32 v5, 3, v1")
    a("v_lshl_add_u32 v10, v5, 10, v4")
    a("v_lshlrev_b32 v4, 2, v3")
    a("v_and_b32 v5, 15, v1")
    a("v_xor_b32 v4, v4, v5")
    a("v_lshlrev_b32 v4, 4, v4")
    a("v_mul_u32_u24 v5, 3584, v3")
    a("v_add_u32 v11, v4, v5")
    a("s_lshl_b32 s48, s44, 17")
    a("s_lshl_b32 s50, s46, 13")
    a("s_add_u32 s48, s48, s50")
    a("s_mul_i32 s49, s46, 14336")
    a("s_lshl_b32 s50, s45, 8")
    a("s_add_u32 s49, s49, s50")
    a("s_lshl_b32 s51, s46, 10")
    a("s_lshl_b32 s60, s42, 1")
    a("s_add_u32 s60, s60, s43")
    a("s_and_b32 s60, s60, 7")
    a("s_mov_b32 s61, s60")

    a(f"s_add_u32 s47, s51, {5*16384}")
    a("s_mov_b32 s65, 0")

    def adv():
        a("s_add_u32 s51, s51, 16384")
        a(f"s_sub_u32 s66, s51, {5*16384}")
        a("s_cmp_ge_u32 s51, s47")
        a("s_cselect_b32 s51, s66, s51")

    def itemA():
        a("s_lshl_b32 s62, s60, 7")
        a("s_add_u32 s62, s62, s48")
        for jj in range(4):
            a(f"s_add_u32 s52, s62, {jj*32768}")
            a(f"s_add_u32 m0, s51, {jj*4096}")
            a("buffer_load_dwordx4 v10, s[24:27], s52 offen sc1 lds")
        a("s_add_u32 s60, s60, 1")
        a("s_and_b32 s60, s60, 7")
        adv()

    def itemB():
        a(f"s_mul_i32 s63, s61, {64*3584}")
        a("s_add_u32 s63, s63, s49")
        for jj in range(4):
            a(f"s_add_u32 s52, s63, {jj*16*3584}")
            a(f"s_add_u32 m0, s51, {jj*4096}")
            a("buffer_load_dwordx4 v11, s[28:31], s52 offen lds")
        a("s_add_u32 s61, s61, 1")
        a("s_and_b32 s61, s61, 7")
        adv()

    itemA()
    a("s_branch G1L_pair")
    a("G1L_loop:")
    a("s_waitcnt vmcnt(4)")
    a("s_barrier")
    a("G1L_pair:")
    a.hist = []
    itemB()
    itemA()
    a("s_add_u32 s65, s65, 1")
    a("s_cmp_lt_u32 s65, 7")
    a("s_cbranch_scc1 G1L_loop")
    a("s_waitcnt vmcnt(4)")
    a("s_barrier")
    itemB()
    a("s_waitcnt vmcnt(0)")
    a("s_barrier")
    a("s_mov_b32 s67, 1")
    epi_setup(a)
    a("v_lshlrev_b32 v4, 4, v1")
    a("v_lshl_add_u32 v4, v2, 13, v4")
    a("s_barrier")
    for q in range(8):
        a(f"ds_read_b128 v[{64+4*q}:{67+4*q}], v4 offset:{16384 + 1024*q}")
    a("s_waitcnt lgkmcnt(0)")
    a("s_branch G1_epi")
    a("G1_compute:")
    a.hist = []
    a("v_and_b32 v4, 31, v1")
    a("v_lshrrev_b32 v5, 5, v1")
    a("v_bfe_u32 v6, v1, 1, 3")
    a("v_xor_b32 v6, v6, v5")
    a("v_lshlrev_b32 v6, 4, v6")
    a("v_and_b32 v7, 1, v2")
    a("v_lshl_add_u32 v7, v7, 6, v4")
    a("v_lshl_add_u32 v12, v7, 7, v6")
    for kk in range(1, 4):
        a(f"v_xor_b32 v{12+kk}, {32*kk}, v12")
    a("v_bfe_u32 v4, v1, 2, 2")
    a("v_lshrrev_b32 v6, 5, v1")
    a("v_lshl_add_u32 v6, v6, 3, v4")
    a("v_lshlrev_b32 v6, 8, v6")
    a("v_bfe_u32 v7, v1, 4, 1")
    a("v_lshl_add_u32 v6, v7, 5, v6")
    a("v_and_b32 v7, 3, v1")
    a("v_lshl_add_u32 v6, v7, 3, v6")
    a("v_and_b32 v7, 2, v2")
    a("v_xor_b32 v8, v7, v4")
    a("v_lshl_add_u32 v16, v8, 6, v6")
    a("v_or_b32 v7, 1, v7")
    a("v_xor_b32 v8, v7, v4")
    a("v_lshl_add_u32 v17, v8, 6, v6")
    for r in range(64, 128, 2):
        a(f"v_mov_b64 v[{r}:{r+1}], 0")
    ACC = lambda ni, mi: 64 + 32 * ni + 16 * mi
    XF = lambda s, mi: 32 + 16 * s + 4 * mi
    WF = lambda s, ni: 40 + 16 * s + 4 * ni
    BR = [4, 10, 24, 26, 28, 30, 12, 14]
    a("s_mov_b32 s60, 0")
    a("s_mov_b32 s65, 0")

    def reads(kk):
        s = kk & 1
        for mi in range(2):
            a(f"ds_read_b128 v[{XF(s,mi)}:{XF(s,mi)+3}], v{18+kk} offset:{4096*mi}")
        for ni in range(2):
            for hf in range(2):
                a(f"ds_read_b64_tr_b16 v[{WF(s,ni)+2*hf}:{WF(s,ni)+2*hf+1}], v{22+ni} offset:{(16*kk+4*hf)*256}")

    a("G1C_loop:")
    a("s_add_u32 s61, s60, 16384")
    a(f"s_cmp_eq_u32 s61, {5*16384}")
    a("s_cselect_b32 s61, 0, s61")
    for i in range(4):
        a(f"v_add_u32 v{18+i}, s60, v{12+i}")
    for i in range(2):
        a(f"v_add_u32 v{22+i}, s61, v{16+i}")
    a("s_add_u32 s60, s61, 16384")
    a(f"s_cmp_eq_u32 s60, {5*16384}")
    a("s_cselect_b32 s60, 0, s60")
    a("s_barrier")
    if PROF:
        a("s_cmp_lg_u32 s65, 0")
        a("s_cbranch_scc1 G1C_nostamp")
        stamp_mid(a, 0, "A")
        a("G1C_nostamp:")
    reads(0)
    a("s_add_u32 s65, s65, 1")
    for kk in range(4):
        if kk < 3:
            reads(kk + 1)
        a(f"s_waitcnt lgkmcnt({6 if kk < 3 else 0})")
        s = kk & 1
        for ni in range(2):
            for mi in range(2):
                c = ACC(ni, mi)
                a(f"v_mfma_f32_32x32x16_bf16 v[{c}:{c+15}], v[{WF(s,ni)}:{WF(s,ni)+3}], v[{XF(s,mi)}:{XF(s,mi)+3}], v[{c}:{c+15}]")
    a("s_cmp_lt_u32 s65, 8")
    a("s_cbranch_scc1 G1C_loop")
    stamp_mid(a, 1, "A")
    a("s_mov_b32 s67, 0")
    epi_setup(a)
    a("v_lshlrev_b32 v4, 4, v1")
    a("v_lshl_add_u32 v4, v2, 13, v4")
    for q in range(8):
        a(f"ds_write_b128 v4, v[{96+4*q}:{99+4*q}] offset:{16384 + 1024*q}")
    a("s_waitcnt lgkmcnt(0)")
    a("s_barrier")
    a("G1_epi:")
    a.hist = []
    T0, BU = 32, 48
    a("s_waitcnt vmcnt(0)")
    for qq in range(4):
        for j in range(2):
            src = 24 + 2 * qq + j
            a(f"v_lshlrev_b32 v{BU+4*qq+2*j}, 16, v{src}")
            a(f"v_and_b32 v{BU+4*qq+2*j+1}, s64, v{src}")
    for mi in range(2):
        c = 64 + 16 * mi
        for j in range(8):
            a(f"v_cvt_pk_bf16_f32 v{T0+j}, v{c+2*j}, v{c+2*j+1}")
        for j in range(8):
            a(f"v_lshlrev_b32 v{c+2*j}, 16, v{T0+j}")
            a(f"v_and_b32 v{c+2*j+1}, s64, v{T0+j}")
        for j in range(8):
            a(f"v_pk_add_f32 v[{c+2*j}:{c+2*j+1}], v[{c+2*j}:{c+2*j+1}], v[{BU+2*j}:{BU+2*j+1}]")
        for j in range(8):
            a(f"v_cvt_pk_bf16_f32 v{T0+j}, v{c+2*j}, v{c+2*j+1}")
        for j in range(8):
            a(f"v_lshlrev_b32 v{c+2*j}, 16, v{T0+j}")
            a(f"v_and_b32 v{c+2*j+1}, s64, v{T0+j}")
        for j in range(8):
            a(f"v_pk_mul_f32 v[{T0+2*j}:{T0+2*j+1}], v[{c+2*j}:{c+2*j+1}], v[{c+2*j}:{c+2*j+1}]")
        for j in range(8):
            a(f"v_pk_fma_f32 v[{T0+2*j}:{T0+2*j+1}], v[{T0+2*j}:{T0+2*j+1}], s[54:55], v[8:9] op_sel_hi:[1,0,0]")
        for j in range(8):
            a(f"v_pk_mul_f32 v[{T0+2*j}:{T0+2*j+1}], v[{T0+2*j}:{T0+2*j+1}], v[{c+2*j}:{c+2*j+1}]")
        for r in range(16):
            a(f"v_exp_f32 v{T0+r}, v{T0+r}")
        for j in range(8):
            a(f"v_pk_add_f32 v[{T0+2*j}:{T0+2*j+1}], v[{T0+2*j}:{T0+2*j+1}], 1.0 op_sel_hi:[1,0]")
        for r in range(16):
            a(f"v_rcp_f32 v{T0+r}, v{T0+r}")
        for j in range(8):
            a(f"v_pk_mul_f32 v[{T0+2*j}:{T0+2*j+1}], v[{T0+2*j}:{T0+2*j+1}], v[{c+2*j}:{c+2*j+1}]")
        for j in range(8):
            a(f"v_cvt_pk_bf16_f32 v{c+j}, v{T0+2*j}, v{T0+2*j+1}")
        for p in range(2):
            a(f"v_permlane32_swap_b32 v{c+4*p}, v{c+2+4*p}")
            a(f"v_permlane32_swap_b32 v{c+1+4*p}, v{c+3+4*p}")
        for p in range(2):
            a(f"ds_write_b128 v{10+p}, v[{c+4*p}:{c+3+4*p}] offset:{8192*mi}")
    for j in range(1, 4):
        a(f"v_xor_b32 v{13+j}, {64*j}, v12")
        a(f"s_add_u32 s{56+j}, s52, {4*3584*j}")
    a("s_waitcnt lgkmcnt(0)")
    a("s_barrier")
    a("ds_read_b128 v[32:35], v12")
    for j in range(1, 4):
        a(f"ds_read_b128 v[{32+4*j}:{35+4*j}], v{13+j} offset:{1024*j}")
    for j in range(4):
        a(f"s_waitcnt lgkmcnt({3-j})")
        a(f"buffer_store_dwordx4 v[{32+4*j}:{35+4*j}], v13, s[24:27], s{52 if j == 0 else 56+j} offen sc1")
    stamp_mid(a, 0, "D")
    a("s_waitcnt vmcnt(0)")
    stamp_mid(a, 1, "D")
    a("s_barrier")
    stamp_mid(a, 0, "B")
    a("v_readfirstlane_b32 s46, v0")
    a("s_cmp_lg_u32 s46, 0")
    a("s_cbranch_scc1 G1_sigdone")
    a("v_mov_b32 v24, 1")
    a("v_mov_b32 v25, 0")
    a("s_lshl_b32 s46, s44, 8")
    a(f"s_add_u32 s46, s46, {hex(CNT + 256)}")
    a("s_mov_b64 exec, 1")
    a("buffer_atomic_add v24, v25, s[24:27], s46 offen sc1")
    a("s_mov_b64 exec, -1")
    a("G1_sigdone:")


def gen_kgen(a):
    a("s_lshl_b32 s45, s47, 14")
    srd(a, 28, 76, 512 * 128 * 2)
    srd(a, 32, 78, 512 * 128 * 2)
    srd(a, 36, 80, 512 * 128 * 2)
    srd(a, 40, 82, 512 * 128 * 2)
    srd(a, 48, 84, 512 * 2)
    a("s_lshl_b32 s8, s3, 8")
    a("s_lshl_b32 s9, s3, 1")
    a("v_mov_b32 v5, 0")
    a("buffer_load_ushort v96, v5, s[48:51], s9 offen")
    a("v_lshlrev_b32 v4, 2, v1")
    a("buffer_load_dword v98, v4, s[36:39], s8 offen")
    a("buffer_load_dword v99, v4, s[40:43], s8 offen")
    a("v_lshrrev_b32 v3, 4, v1")
    a("v_lshlrev_b32 v6, 3, v3")
    a("v_lshl_add_u32 v6, v2, 6, v6")
    for ks in range(2):
        for k in range(4):
            a(f"buffer_load_dwordx2 v[{64+8*ks+2*k}:{65+8*ks+2*k}], v6, s[{28+4*k}:{31+4*k}], s8 offen offset:{32*ks}")
    a("s_mov_b32 s60, 0x3fb8aa3b")
    a("s_mov_b32 s62, 0x32a57060")
    a(f"s_mov_b32 s66, {hexf(math.log(2))}")
    a("v_and_b32 v4, 15, v1")
    a("v_lshlrev_b32 v8, 4, v4")
    a("v_mov_b32 v9, v4")
    a("v_lshlrev_b32 v10, 1, v4")
    a("v_add_u32 v10, 256, v10")
    a("v_bfe_u32 v32, v4, 2, 1")
    a("v_lshlrev_b32 v32, 8, v32")
    a("v_and_b32 v33, 3, v4")
    a("v_lshl_add_u32 v32, v33, 2, v32")
    a("v_add_u32 v32, 512, v32")
    a("v_cmp_gt_u32 vcc, 8, v4")
    a("v_cndmask_b32 v10, v32, v10, vcc")
    a("v_lshrrev_b32 v32, 1, v4")
    a("v_lshlrev_b32 v32, 8, v32")
    a("v_and_b32 v33, 1, v4")
    a("v_lshl_add_u32 v32, v33, 3, v32")
    a("v_add_u32 v11, 1024, v32")
    a("v_mov_b32 v33, 2304")
    a("v_cmp_gt_u32 vcc, 9, v4")
    a("v_cndmask_b32 v11, v33, v11, vcc")
    for r in (8, 9, 10, 11):
        a(f"v_cvt_f32_u32 v{r}, v{r}")
    a("v_mov_b32 v30, v11")
    a("v_mov_b32 v28, v10")
    a(f"v_mul_u32_u24 v32, {TS}, v2")
    a("v_add_u32 v32, s45, v32")
    a("v_lshl_add_u32 v12, v4, 2, v32")
    a("v_lshl_add_u32 v12, v3, 8, v12")
    a("v_mov_b32 v15, 64")
    for t in (1, 2):
        a(f"v_lshrrev_b32 v33, 16, v{9+t}")
        a("v_subrev_u32 v33, 0x4280, v33")
        a(f"v_lshrrev_b32 v34, 23, v{9+t}")
        a("v_subrev_u32 v34, 134, v34")
        a(f"v_lshrrev_b32 v{15+t}, v34, v15")
        a(f"v_mul_u32_u24 v35, v{15+t}, v3")
        a("v_lshl_add_u32 v35, v35, 2, v32")
        a(f"v_lshl_add_u32 v{12+t}, v33, 2, v35")
    a("v_mov_b32 v10, v9")
    for r in range(116, 128, 2):
        a(f"v_mov_b64 v[{r}:{r+1}], 0")
    a("v_lshlrev_b32 v32, 3, v0")
    a("v_sub_u32 v32, 2047, v32")
    for e in range(9):
        a(f"v_subrev_u32 v{18+e}, {e}, v32")
    a("v_max_i32 v26, 0, v26")
    for e in range(9):
        a(f"v_cvt_f32_u32 v{32+e}, v{18+e}")
    for j in range(5):
        a(f"v_cvt_pk_bf16_f32 v{32+2*j}, v{32+2*j}, v{min(33+2*j, 40)}")
    for j in range(5):
        if j < 4:
            a(f"v_lshrrev_b32 v{33+2*j}, 16, v{32+2*j}")
        a(f"v_and_b32 v{32+2*j}, 0xffff, v{32+2*j}")
    for e in range(9):
        a(f"v_subrev_u32 v{32+e}, 0x4280, v{32+e}")
    for e in range(9):
        a(f"v_cmp_gt_u32 vcc, 128, v{18+e}")
        a(f"v_cndmask_b32 v{18+e}, v{32+e}, v{18+e}, vcc")
    for e in range(9):
        a(f"v_lshl_add_u32 v{18+e}, v{18+e}, 2, s45")
    a("s_waitcnt vmcnt(10)")
    a("v_lshlrev_b32 v96, 16, v96")
    a("v_mul_f32 v4, s60, v96")
    a("v_fma_f32 v5, v96, s60, -v4")
    a("v_fma_f32 v5, v96, s62, v5")
    a("v_exp_f32 v4, v4")
    a("v_mul_f32 v5, s66, v5")
    a("v_fma_f32 v96, v4, v5, v4")
    a("v_cvt_pk_bf16_f32 v96, v96, v96")
    a("v_and_b32 v96, s64, v96")
    a("s_waitcnt vmcnt(8)")
    a("v_lshlrev_b32 v4, 16, v98")
    a("v_and_b32 v5, s64, v98")
    a("v_lshlrev_b32 v6, 16, v99")
    a("v_and_b32 v7, s64, v99")
    a("v_add_f32 v4, |v4|, |v5|")
    a("v_add_f32 v6, |v6|, |v7|")
    a("v_add_f32 v98, v4, v6")
    reduce_sum(a, [98], [99])
    a("v_mul_f32 v98, v98, v96")
    a("v_add_f32 v98, v98, v98")
    a("v_lshrrev_b32 v98, 23, v98")
    a("v_sub_u32 v98, 268, v98")
    a("v_min_u32 v98, 240, v98")
    a("v_sub_u32 v99, 244, v98")
    a("v_lshlrev_b32 v99, 23, v99")
    a("v_lshlrev_b32 v98, 23, v98")
    a("v_mul_f32 v98, v98, v96")
    a("v_add_f32 v98, v98, v98")
    a("v_mul_f32 v4, 0xbfb8aa3b, v96")
    a("v_mul_f32 v5, 0.15915494, v96")

    def cexp(preg):
        pp = preg & ~1
        sel = "op_sel_hi:[1,0]" if preg == pp else "op_sel:[0,1] op_sel_hi:[1,1]"
        for u in range(4):
            a(f"v_pk_mul_f32 v[{48+2*u}:{49+2*u}], v[{32+2*u}:{33+2*u}], v[{pp}:{pp+1}] {sel}")
        for u in range(4):
            a(f"v_fract_f32 v{49+2*u}, v{49+2*u}")
        for u in range(4):
            a(f"v_exp_f32 v{48+2*u}, v{48+2*u}")
            a(f"v_cos_f32 v{56+2*u}, v{49+2*u}")
            a(f"v_sin_f32 v{57+2*u}, v{49+2*u}")
        for u in range(4):
            a(f"v_pk_mul_f32 v[{56+2*u}:{57+2*u}], v[{56+2*u}:{57+2*u}], v[{48+2*u}:{49+2*u}] op_sel_hi:[1,0]")

    for ks in range(2):
        R = 64 + 8 * ks
        a(f"s_waitcnt vmcnt({4*(1-ks)})")
        for j in range(2):
            a(f"v_lshlrev_b32 v{48+2*j}, 16, v{R+j}")
            a(f"v_and_b32 v{49+2*j}, s64, v{R+j}")
        for j in range(2):
            a(f"v_pk_mul_f32 v[{52+2*j}:{53+2*j}], v[{48+2*j}:{49+2*j}], s[60:61] op_sel_hi:[1,0]")
        for j in range(2):
            a(f"v_pk_fma_f32 v[{56+2*j}:{57+2*j}], v[{48+2*j}:{49+2*j}], s[60:61], v[{52+2*j}:{53+2*j}] op_sel_hi:[1,0,1] neg_lo:[0,0,1] neg_hi:[0,0,1]")
        for j in range(2):
            a(f"v_pk_fma_f32 v[{56+2*j}:{57+2*j}], v[{48+2*j}:{49+2*j}], s[62:63], v[{56+2*j}:{57+2*j}] op_sel_hi:[1,0,1]")
        for u in range(4):
            a(f"v_exp_f32 v{52+u}, v{52+u}")
        for j in range(2):
            a(f"v_pk_mul_f32 v[{56+2*j}:{57+2*j}], v[{56+2*j}:{57+2*j}], s[66:67] op_sel_hi:[1,0]")
        for j in range(2):
            a(f"v_pk_fma_f32 v[{52+2*j}:{53+2*j}], v[{52+2*j}:{53+2*j}], v[{56+2*j}:{57+2*j}], v[{52+2*j}:{53+2*j}]")
        for j in range(2):
            a(f"v_cvt_pk_bf16_f32 v{48+j}, v{52+2*j}, v{53+2*j}")
        for j in range(2):
            a(f"v_lshlrev_b32 v{32+4*j}, 16, v{48+j}")
            a(f"v_and_b32 v{34+4*j}, s64, v{48+j}")
            a(f"v_lshlrev_b32 v{33+4*j}, 16, v{R+2+j}")
            a(f"v_and_b32 v{35+4*j}, s64, v{R+2+j}")
            a(f"v_lshlrev_b32 v{40+4*j}, 16, v{R+4+j}")
            a(f"v_and_b32 v{42+4*j}, s64, v{R+4+j}")
            a(f"v_lshlrev_b32 v{41+4*j}, 16, v{R+6+j}")
            a(f"v_and_b32 v{43+4*j}, s64, v{R+6+j}")
        for u in range(4):
            a(f"v_pk_mul_f32 v[{32+2*u}:{33+2*u}], v[{32+2*u}:{33+2*u}], v[4:5]")
            a(f"v_pk_mul_f32 v[{40+2*u}:{41+2*u}], v[{40+2*u}:{41+2*u}], v[98:99] op_sel_hi:[1,0]")
        cexp(8)
        for u in range(4):
            a(f"v_pk_mul_f32 v[{100+2*u}:{101+2*u}], v[{56+2*u}:{57+2*u}], v[{40+2*u}:{41+2*u}] op_sel_hi:[1,0] neg_hi:[0,1]")
        for u in range(4):
            a(f"v_fma_f32 v{100+2*u}, -v{41+2*u}, v{57+2*u}, v{100+2*u}")
            a(f"v_fma_f32 v{101+2*u}, -v{41+2*u}, v{56+2*u}, v{101+2*u}")
        for u in range(4):
            a(f"v_cvt_pk_f16_f32 v{108+u}, v{100+2*u}, v{101+2*u}")
        for t in range(3):
            cexp((10, 28, 30)[t])
            for u in range(4):
                a(f"v_cvt_pk_f16_f32 v{112+u}, v{56+2*u}, v{57+2*u}")
            acc = f"v[{116+4*t}:{119+4*t}]"
            a(f"v_mfma_f32_16x16x32_f16 {acc}, v[108:111], v[112:115], {acc}")
    a("v_lshl_add_u32 v4, v0, 2, s45")
    a(f"s_mul_i32 s8, s3, {KRS}")
    a(f"s_add_u32 s12, s8, {hex(KR2)}")
    a(f"s_add_u32 s8, s8, {hex(KR)}")
    a("v_lshlrev_b32 v5, 4, v0")
    a("s_lshl_b32 s9, s3, 2")
    a(f"s_add_u32 s9, s9, {hex(KINV)}")
    for t in range(3):
        for r in range(4):
            a(f"ds_write_b32 v{12+t}, v{116+4*t+r}")
            if r < 3:
                a(f"v_add_u32 v{12+t}, v{12+t}, v{15+t}")
    a("s_waitcnt lgkmcnt(0)")
    a("s_barrier")
    for k in range(3):
        for w in range(4):
            a(f"ds_read_b32 v{32+4*k+w}, v4 offset:{TS*w + 1024*k}")
    a("s_waitcnt lgkmcnt(0)")
    for k in range(3):
        a(f"v_pk_add_f32 v[{32+4*k}:{33+4*k}], v[{32+4*k}:{33+4*k}], v[{34+4*k}:{35+4*k}]")
    for k in range(3):
        a(f"v_add_f32 v{32+4*k}, v{32+4*k}, v{33+4*k}")
    for k in range(3):
        a(f"ds_write_b32 v4, v{32+4*k} offset:{4*TS + 1024*k}")
    a("s_waitcnt lgkmcnt(0)")
    a("s_barrier")
    for e in range(9):
        a(f"ds_read_b32 v{32+e}, v{18+e} offset:{4*TS}")
    a("v_cmp_gt_u32 vcc, 255, v0")
    a("v_mov_b64 v[52:53], 0")
    a("v_mov_b64 v[54:55], 0")
    a("s_waitcnt lgkmcnt(0)")
    a("v_cndmask_b32 v40, 0, v40, vcc")
    for j in range(4):
        a(f"v_cvt_pk_f16_f32 v{44+j}, v{32+2*j}, v{33+2*j}")
        a(f"v_cvt_pk_f16_f32 v{48+j}, v{33+2*j}, v{34+2*j}")
    a("buffer_store_dwordx4 v[44:47], v5, s[24:27], s8 offen sc1")
    a("buffer_store_dwordx4 v[48:51], v5, s[24:27], s12 offen sc1")
    a("v_add_u32 v5, 4096, v5")
    a("v_cmp_gt_u32 vcc, 4, v0")
    a("s_and_saveexec_b64 s[10:11], vcc")
    a("s_cbranch_execz P_done2")
    a("buffer_store_dwordx4 v[52:55], v5, s[24:27], s8 offen sc1")
    a("buffer_store_dwordx4 v[52:55], v5, s[24:27], s12 offen sc1")
    a("P_done2:")
    a("s_mov_b64 exec, -1")
    a("v_mov_b32 v22, v99")
    a("s_waitcnt vmcnt(0)")
    a("s_barrier")


def gen_mid():
    a = Asm()
    kernel_head(a, "mid_kernel")
    a(f"s_cmp_ge_u32 s2, {NG1 + NKG}")
    a("s_cbranch_scc1 M_done")
    stamp_start(a)
    a("s_load_dwordx2 s[4:5], s[0:1], 112")
    a("s_load_dwordx4 s[8:11], s[0:1], 64")
    a("v_and_b32 v1, 63, v0")
    a("v_lshrrev_b32 v2, 6, v0")
    a("s_mov_b32 s64, 0xffff0000")
    a("v_readfirstlane_b32 s46, v2")
    a("s_waitcnt lgkmcnt(0)")
    srd(a, 24, 4, WS_USED)
    srd(a, 28, 8, 512 * 1792 * 2)
    srd(a, 32, 10, 1792 * 2)
    if os.environ.get("ROLE") == "conv":
        a("s_endpgm")
    gen_gemm1(a)
    a("M_done:")
    a("s_endpgm")
    return a, f"; @launch kernel=mid_kernel grid=({NG1+NKG},1,1) block=(512,1,1) lds={LDS_MID}"
```

```python
from asmlib import Asm, hexf
from gen import *
import math
import gen2

NCV = 256
NG2 = 256
LDS_FIN = 81920
NKS = 14
HBS = 40192
XMO = 33792


def wait_init(a, lbl):
    a("v_mov_b32 v4, 0")
    a(f"{lbl}:")
    a("buffer_load_dword v5, v4, s[68:71], 0 offen sc1")
    a("s_waitcnt vmcnt(0)")
    a("v_readfirstlane_b32 s52, v5")
    a("s_cmp_lg_u32 s52, 0")
    a(f"s_cbranch_scc1 {lbl}_ok")
    a("s_sleep 16")
    a(f"s_branch {lbl}")
    a(f"{lbl}_ok:")
    a.hist = []


def gen_ln(a):
    srd(a, 28, 6, 2048 * 512 * 2)
    a("v_lshlrev_b32 v3, 4, v1")
    a("v_lshl_add_u32 v3, v2, 10, v3")
    a("s_lshl_b32 s3, s2, 13")
    a("buffer_load_dwordx4 v[8:11], v3, s[28:31], s3 offen")
    a("s_lshl_b32 s40, s2, 3")
    a("s_add_u32 s40, s40, s46")
    a("s_cmp_lg_u32 s40, 7")
    a("s_cbranch_scc1 LN_noinit")
    a("v_lshlrev_b32 v4, 8, v1")
    a("v_mov_b32 v5, 0")
    a(f"s_mov_b32 s40, {hex(CNT)}")
    a("buffer_store_dword v5, v4, s[24:27], s40 offen sc1")
    a("v_mov_b32 v6, 1")
    a("s_waitcnt vmcnt(0)")
    a("s_mov_b64 exec, 1")
    a("buffer_store_dword v6, v5, s[68:71], 0 offen sc1")
    a("s_mov_b64 exec, -1")
    a("LN_noinit:")
    a.hist = []
    a("v_mul_u32_u24 v4, 1088, v2")
    a("v_lshl_add_u32 v4, v1, 4, v4")
    a("v_bfe_u32 v5, v1, 2, 2")
    a("v_mul_u32_u24 v5, 1088, v5")
    a("v_lshrrev_b32 v6, 4, v1")
    a("v_lshl_add_u32 v5, v6, 5, v5")
    a("v_and_b32 v6, 3, v1")
    a("v_lshl_add_u32 v5, v6, 3, v5")
    a("v_lshl_add_u32 v5, v2, 7, v5")
    a("v_lshlrev_b32 v7, 4, v0")
    a(f"s_add_u32 s40, s3, {hex(XT)}")
    F = lambda e: 24 + e
    S, T, Q = 56, 57, 58
    a("s_waitcnt vmcnt(0)")
    for j in range(4):
        a(f"v_lshlrev_b32 v{F(2*j)}, 16, v{8+j}")
        a(f"v_and_b32 v{F(2*j+1)}, s64, v{8+j}")
    a("v_pk_add_f32 v[72:73], v[24:25], v[26:27]")
    a("v_pk_add_f32 v[74:75], v[28:29], v[30:31]")
    a("s_nop 0")
    a("v_pk_add_f32 v[72:73], v[72:73], v[74:75]")
    a("s_nop 0")
    a(f"v_add_f32 v{S}, v72, v73")
    reduce_sum(a, [S], [T])
    a(f"v_mul_f32 v{S}, {hexf(1/512)}, v{S}")
    for j in range(4):
        a(f"v_pk_add_f32 v[{72+2*j}:{73+2*j}], v[{F(2*j)}:{F(2*j+1)}], v[{S}:{S+1}] op_sel_hi:[1,0] neg_lo:[0,1] neg_hi:[0,1]")
    a("v_pk_mul_f32 v[80:81], v[72:73], v[72:73]")
    for j in range(1, 4):
        a("s_nop 0")
        a(f"v_pk_fma_f32 v[80:81], v[{72+2*j}:{73+2*j}], v[{72+2*j}:{73+2*j}], v[80:81]")
    a("s_nop 0")
    a(f"v_add_f32 v{Q}, v80, v81")
    reduce_sum(a, [Q], [T])
    a(f"v_mul_f32 v{Q}, {hexf(1/512)}, v{Q}")
    a(f"v_cvt_pk_bf16_f32 v{T}, v{S}, v{Q}")
    a(f"v_lshlrev_b32 v{S}, 16, v{T}")
    a(f"v_and_b32 v{Q}, s64, v{T}")
    a(f"v_add_f32 v{Q}, {hexf(1e-5)}, v{Q}")
    a(f"v_cvt_pk_bf16_f32 v{Q}, v{Q}, v{Q}")
    a(f"v_and_b32 v{Q}, s64, v{Q}")
    a(f"v_sqrt_f32 v{Q}, v{Q}")
    a(f"v_cvt_pk_bf16_f32 v{Q}, v{Q}, v{Q}")
    a(f"v_and_b32 v{Q}, s64, v{Q}")
    a(f"v_rcp_f32 v{Q}, v{Q}")
    a("s_mov_b32 s42, 0x44800000")
    for j in range(4):
        a(f"v_pk_add_f32 v[{F(2*j)}:{F(2*j+1)}], v[{F(2*j)}:{F(2*j+1)}], v[{S}:{S+1}] op_sel_hi:[1,0] neg_lo:[0,1] neg_hi:[0,1]")
    for j in range(4):
        a(f"v_cvt_pk_bf16_f32 v{8+j}, v{F(2*j)}, v{F(2*j+1)}")
    for j in range(4):
        a(f"v_lshlrev_b32 v{F(2*j)}, 16, v{8+j}")
        a(f"v_and_b32 v{F(2*j+1)}, s64, v{8+j}")
    for j in range(4):
        a(f"v_pk_mul_f32 v[{F(2*j)}:{F(2*j+1)}], v[{F(2*j)}:{F(2*j+1)}], v[{Q}:{Q+1}] op_sel_hi:[1,0]")
    for j in range(4):
        a(f"v_cvt_pk_bf16_f32 v{8+j}, v{F(2*j)}, v{F(2*j+1)}")
    a("buffer_store_dwordx4 v[8:11], v3, s[24:27], s3 offen sc1")
    for j in range(4):
        a(f"v_lshlrev_b32 v{F(2*j)}, 16, v{8+j}")
        a(f"v_and_b32 v{F(2*j+1)}, s64, v{8+j}")
    for j in range(4):
        a(f"v_pk_mul_f32 v[{F(2*j)}:{F(2*j+1)}], v[{F(2*j)}:{F(2*j+1)}], s[42:43] op_sel_hi:[1,0]")
    for j in range(4):
        a(f"v_cvt_pk_f16_f32 v{72+j}, v{F(2*j)}, v{F(2*j+1)}")
    a("ds_write_b128 v4, v[72:75]")
    a("s_waitcnt lgkmcnt(0)")
    a("s_barrier")
    a("ds_read_b64_tr_b16 v[24:25], v5")
    a(f"ds_read_b64_tr_b16 v[26:27], v5 offset:{4*1088}")
    a("s_waitcnt lgkmcnt(0)")
    a("buffer_store_dwordx4 v[24:27], v7, s[24:27], s40 offen sc1")
    a("s_waitcnt vmcnt(0)")
    a("s_barrier")
    a("s_cmp_lg_u32 s46, 0")
    a("s_cbranch_scc1 LN_sig")
    wait_init(a, "LN_wi")
    a("v_mov_b32 v24, 1")
    a("v_mov_b32 v25, 0")
    a("s_lshr_b32 s40, s2, 4")
    a("s_lshl_b32 s40, s40, 8")
    a(f"s_add_u32 s40, s40, {hex(CNT + 17*256)}")
    a("s_mov_b64 exec, 1")
    a("buffer_atomic_add v24, v25, s[24:27], s40 offen sc1")
    a("s_mov_b64 exec, -1")
    a("LN_sig:")
    a.hist = []


def gen_conv(a):
    a(f"s_setprio {os.environ.get('CPRIO', '0')}")
    a("s_lshr_b32 s47, s46, 2")
    a("s_and_b32 s46, s46, 3")
    a("v_and_b32 v0, 255, v0")
    a("v_and_b32 v2, 3, v2")
    a(f"s_sub_u32 s3, s2, {NG2}")
    a("s_lshl_b32 s3, s3, 1")
    a("s_add_u32 s3, s3, s47")
    a("s_waitcnt lgkmcnt(0)")
    srd(a, 24, 4, WS_USED)
    srd(a, 68, 16, 256)
    gen2.gen_kgen(a)
    a(f"s_mul_i32 s45, s47, {HBS}")
    a("v_sub_u32 v3, 2079, v1")
    a("v_and_b32 v4, 1, v3")
    a("v_and_b32 v3, 0xfffffffe, v3")
    a("v_lshlrev_b32 v3, 1, v3")
    a(f"s_mov_b32 s40, {hex(KR2 - KR)}")
    a("v_mul_lo_u32 v4, v4, s40")
    a("v_add_u32 v3, v3, v4")
    a(f"s_mul_i32 s40, s3, {KRS}")
    a(f"s_add_u32 s40, s40, {hex(KR)}")
    a("s_lshl_b32 s41, s46, 7")
    a("s_sub_u32 s40, s40, s41")
    a("s_lshl_b32 s41, s46, 10")
    a("s_add_u32 s41, s41, s45")
    a("s_lshl_b32 s43, s3, 12")
    srd(a, 36, 14, 512 * 2)
    a("v_mov_b32 v5, 0")
    a("s_lshl_b32 s44, s3, 1")
    a("buffer_load_ushort v20, v5, s[36:39], s44 offen")
    for jj in range(8):
        a(f"s_sub_u32 s42, s40, {512*jj}")
        a(f"s_add_u32 m0, s41, {4096*jj}")
        a("buffer_load_dwordx4 v3, s[24:27], s42 offen sc1 lds")
    a("s_cmp_lg_u32 s46, 0")
    a("s_cbranch_scc1 C_skip33")
    a(f"s_sub_u32 s42, s40, {512*8}")
    a(f"s_add_u32 m0, s41, {4096*8}")
    a("s_nop 0")
    a("buffer_load_dwordx4 v3, s[24:27], s42 offen sc1 lds")
    a("C_skip33:")
    a.hist = []
    a("s_or_b32 s40, s46, s47")
    a("s_cmp_lg_u32 s40, 0")
    a("s_cbranch_scc1 C_go")
    wait_init(a, "C_wi")
    a("v_and_b32 v4, 15, v1")
    a("v_lshlrev_b32 v4, 8, v4")
    a(f"s_mov_b32 s40, {hex(CNT + 17*256)}")
    a("C_poll:")
    a("buffer_load_dword v5, v4, s[24:27], s40 offen sc1")
    a("s_waitcnt vmcnt(0)")
    a("v_cmp_gt_u32 vcc, 16, v5")
    a("s_nop 4")
    a("s_cmp_eq_u64 vcc, 0")
    a("s_cbranch_scc1 C_go")
    a("s_sleep 8")
    a("s_branch C_poll")
    a("C_go:")
    a.hist = []
    a("s_barrier")
    a("v_lshlrev_b32 v4, 13, v0")
    a("s_lshl_b32 s44, s3, 4")
    a(f"s_add_u32 s44, s44, {hex(XT)}")
    a("buffer_load_dwordx4 v[8:11], v4, s[24:27], s44 offen sc1")
    a("v_lshlrev_b32 v4, 4, v0")
    a("v_mov_b64 v[12:13], 0")
    a("v_mov_b64 v[14:15], 0")
    a(f"v_min_u32 v5, {79*16}, v4")
    a("v_add_u32 v5, s45, v5")
    a(f"ds_write_b128 v5, v[12:15] offset:{XMO}")
    a("v_lshrrev_b32 v5, 2, v0")
    a("v_mul_u32_u24 v5, 80, v5")
    a("v_and_b32 v6, 3, v0")
    a("v_lshl_add_u32 v5, v6, 4, v5")
    a("v_add_u32 v5, s45, v5")
    a("v_and_b32 v6, 15, v1")
    a("v_lshrrev_b32 v7, 4, v1")
    a("v_lshlrev_b32 v16, 4, v6")
    a("v_lshlrev_b32 v17, 7, v7")
    a("v_sub_u32 v16, v16, v17")
    a("v_lshl_add_u32 v16, v2, 9, v16")
    a("v_add_u32 v16, s45, v16")
    a("v_add_u32 v16, 512, v16")
    a("v_add_u32 v17, 4, v6")
    a("v_sub_u32 v17, v17, v2")
    a("v_mul_u32_u24 v17, 80, v17")
    a("v_lshl_add_u32 v17, v7, 4, v17")
    a("v_add_u32 v17, s45, v17")
    for r in range(96, 128, 2):
        a(f"v_mov_b64 v[{r}:{r+1}], 0")
    a("s_waitcnt vmcnt(0)")
    a(f"ds_write_b128 v5, v[8:11] offset:{XMO + 16*80}")
    a("s_waitcnt vmcnt(0) lgkmcnt(0)")
    a("s_barrier")
    stamp_mid(a, 0)
    AF = lambda k, hf: 24 + 8 * k + 4 * hf
    BF = lambda s, t: 56 + 16 * s + 4 * t
    ACC = lambda hf, t: 96 + 16 * hf + 4 * t

    def rdA(it, k):
        for hf in range(2):
            a(f"ds_read_b128 v[{AF(k,hf)}:{AF(k,hf)+3}], v16 offset:{2048*it + 8192*k + 256*hf}")

    def rdB(it):
        for t in range(4):
            a(f"ds_read_b128 v[{BF(it&1,t)}:{BF(it&1,t)+3}], v17 offset:{XMO + (12-4*it)*80 + 1280*t}")

    rdB(0)
    for k in range(4):
        rdA(0, k)
    for it in range(4):
        last = it == 3
        if it == 0:
            a("s_waitcnt lgkmcnt(8)")
        if not last:
            rdB(it + 1)
        for k in range(4):
            a(f"s_waitcnt lgkmcnt({10 if not last else 2*(3-k)})")
            for t in range(k, 4):
                for hf in range(2):
                    c = ACC(hf, t)
                    a(f"v_mfma_f32_16x16x32_f16 v[{c}:{c+3}], v[{AF(k,hf)}:{AF(k,hf)+3}], v[{BF(it&1,t-k)}:{BF(it&1,t-k)+3}], v[{c}:{c+3}]")
            if not last:
                rdA(it + 1, k)
    a("v_lshlrev_b32 v4, 4, v1")
    a("v_add_u32 v4, s45, v4")
    a("v_lshl_add_u32 v5, v2, 11, v4")
    a("v_lshl_add_u32 v4, v2, 13, v4")
    a("v_and_b32 v8, 1, v2")
    a("v_lshl_add_u32 v8, v8, 5, v6")
    a("v_lshrrev_b32 v9, 1, v2")
    a("v_lshlrev_b32 v9, 5, v9")
    a("v_lshl_add_u32 v9, v7, 3, v9")
    a("v_mul_u32_u24 v10, 80, v8")
    a("v_add_u32 v10, v10, v9")
    a("v_add_u32 v10, s45, v10")
    a("v_lshl_add_u32 v11, v8, 6, v9")
    a("v_add_u32 v11, s45, v11")
    a(f"s_add_u32 s43, s43, {hex(ST)}")
    a("v_lshlrev_b32 v20, 16, v20")
    a(f"v_mul_f32 v20, {hexf(1/1024)}, v20")
    a("s_barrier")
    stamp_mid(a, 1)
    for q in range(8):
        a(f"ds_write_b128 v4, v[{96+4*q}:{99+4*q}] offset:{1024*q}")
    for j in range(2):
        a(f"ds_read_b64 v[{12+2*j}:{13+2*j}], v10 offset:{XMO + 16*80 + 1280*j}")
    a("s_waitcnt lgkmcnt(0)")
    a("s_barrier")
    for j in range(2):
        for w in range(4):
            a(f"ds_read_b128 v[{24+16*j+4*w}:{27+16*j+4*w}], v5 offset:{8192*w + 1024*j}")
    for j in range(2):
        b = 64 + 16 * j
        for e2 in range(2):
            a(f"v_cvt_f32_f16 v{b+4+2*e2}, v{12+2*j+e2}")
            a(f"v_lshrrev_b32 v{b+5+2*e2}, 16, v{12+2*j+e2}")
        for e2 in range(2):
            a(f"v_cvt_f32_f16 v{b+5+2*e2}, v{b+5+2*e2}")
        for e2 in range(2):
            a(f"v_pk_mul_f32 v[{b+4+2*e2}:{b+5+2*e2}], v[{b+4+2*e2}:{b+5+2*e2}], v[20:21] op_sel_hi:[1,0]")
        for e2 in range(2):
            a(f"v_cvt_pk_bf16_f32 v{b+10+e2}, v{b+4+2*e2}, v{b+5+2*e2}")
        for e2 in range(2):
            a(f"v_lshlrev_b32 v{b+4+2*e2}, 16, v{b+10+e2}")
            a(f"v_and_b32 v{b+5+2*e2}, s64, v{b+10+e2}")
    a("s_waitcnt lgkmcnt(0)")
    for j in range(2):
        b = 64 + 16 * j
        p = 24 + 16 * j
        for e in range(0, 4, 2):
            a(f"v_pk_add_f32 v[{p+e}:{p+e+1}], v[{p+e}:{p+e+1}], v[{p+4+e}:{p+5+e}]")
            a(f"v_pk_add_f32 v[{p+8+e}:{p+9+e}], v[{p+8+e}:{p+9+e}], v[{p+12+e}:{p+13+e}]")
        for e in range(0, 4, 2):
            a(f"v_pk_add_f32 v[{b+e}:{b+e+1}], v[{p+e}:{p+e+1}], v[{p+8+e}:{p+9+e}]")
        for e in range(0, 4, 2):
            a(f"v_pk_mul_f32 v[{b+e}:{b+e+1}], v[{b+e}:{b+e+1}], v[22:23] op_sel_hi:[1,0]")
        for e2 in range(2):
            a(f"v_cvt_pk_bf16_f32 v{b+8+e2}, v{b+2*e2}, v{b+2*e2+1}")
        for e2 in range(2):
            a(f"v_lshlrev_b32 v{b+2*e2}, 16, v{b+8+e2}")
            a(f"v_and_b32 v{b+2*e2+1}, s64, v{b+8+e2}")
        for e in range(0, 4, 2):
            a(f"v_pk_add_f32 v[{b+e}:{b+e+1}], v[{b+e}:{b+e+1}], v[{b+4+e}:{b+5+e}]")
        for e2 in range(2):
            a(f"v_cvt_pk_bf16_f32 v{b+8+e2}, v{b+2*e2}, v{b+2*e2+1}")
    a("v_lshlrev_b32 v4, 4, v0")
    a("v_add_u32 v5, s45, v4")
    a("s_barrier")
    for j in range(2):
        a(f"ds_write_b64 v11, v[{72+16*j}:{73+16*j}] offset:{1024*j}")
    a("s_waitcnt lgkmcnt(0)")
    a("s_barrier")
    a("ds_read_b128 v[24:27], v5")
    a("s_waitcnt lgkmcnt(0)")
    a("buffer_store_dwordx4 v[24:27], v4, s[24:27], s43 offen sc1")
    a("s_waitcnt vmcnt(0)")
    a("s_barrier")
    a("C_sig:")
    a("s_or_b32 s40, s46, s47")
    a("s_cmp_lg_u32 s40, 0")
    a("s_cbranch_scc1 C_end")
    a("v_mov_b32 v24, 1")
    a("v_mov_b32 v25, 0")
    a(f"s_mov_b32 s40, {hex(CNT)}")
    a("s_mov_b64 exec, 1")
    a("buffer_atomic_add v24, v25, s[24:27], s40 offen sc1")
    a("s_mov_b64 exec, -1")
    a("C_end:")
    if PROF:
        a("v_lshl_add_u32 v0, s47, 8, v0")
    endpgm(a, 0)


def gen_fin():
    a = Asm()
    kernel_head(a, "fin_kernel")
    a(f"s_cmp_ge_u32 s2, {NCV + NG2}")
    a("s_cbranch_scc1 F_done")
    stamp_start(a)
    a("s_load_dwordx2 s[4:5], s[0:1], 112")
    a("s_load_dwordx4 s[8:11], s[0:1], 80")
    a("s_load_dwordx2 s[6:7], s[0:1], 0")
    a("s_load_dwordx2 s[12:13], s[0:1], 96")
    a("s_load_dwordx2 s[14:15], s[0:1], 48")
    a("s_load_dwordx2 s[16:17], s[0:1], 104")
    a("s_load_dwordx4 s[72:75], s[0:1], 64")
    a("s_load_dwordx8 s[76:83], s[0:1], 8")
    a("s_load_dwordx2 s[84:85], s[0:1], 40")
    a("v_and_b32 v1, 63, v0")
    a("v_lshrrev_b32 v2, 6, v0")
    a("s_mov_b32 s64, 0xffff0000")
    a("v_readfirstlane_b32 s46, v2")
    a(f"s_cmp_lt_u32 s2, {NG2}")
    a("s_cbranch_scc1 F_gemm")
    gen_conv(a)
    a("F_gemm:")
    a.hist = []
    a(f"s_setprio {os.environ.get('GPRIO', '2')}")
    a("s_waitcnt lgkmcnt(0)")
    srd(a, 24, 4, WS_USED)
    srd(a, 68, 16, 256)
    gen_ln(a)
    a(f"s_cmp_lt_u32 s2, {gen2.NG1}")
    a("s_cbranch_scc1 F_g1")
    srd(a, 28, 8, 1792 * 512 * 2)
    a(f"s_sub_u32 s40, s2, {gen2.NG1}")
    a("s_lshr_b32 s40, s40, 3")
    a(f"s_mul_i32 s40, s40, {1792*1024//4}")
    a("v_lshlrev_b32 v4, 7, v0")
    for j in range(7):
        a(f"s_add_u32 s41, s40, {65536*j}")
        a(f"buffer_load_dword v{8+j}, v4, s[28:31], s41 offen")
    a("s_waitcnt vmcnt(0)")
    a("s_branch F_g2")
    a("F_g1:")
    a.hist = []
    srd(a, 28, 72, 512 * 1792 * 2)
    srd(a, 32, 74, 1792 * 2)
    gen2.gen_gemm1(a)
    a("F_g2:")
    a.hist = []
    a("v_lshrrev_b32 v2, 6, v0")
    a("s_nop 1")
    a("v_readfirstlane_b32 s46, v2")
    a("s_and_b32 s40, s2, 7")
    a("s_lshr_b32 s41, s2, 3")
    a("s_lshr_b32 s44, s41, 3")
    a("s_lshl_b32 s40, s40, 2")
    a("s_add_u32 s44, s44, s40")
    a("s_and_b32 s45, s41, 7")
    a("s_cmp_lg_u32 s46, 0")
    a("s_cbranch_scc1 FL_go")
    a("s_lshr_b32 s50, s44, 1")
    a("s_lshl_b32 s50, s50, 8")
    a(f"s_add_u32 s50, s50, {hex(CNT + 256)}")
    a("v_mov_b32 v4, 0")
    a("FL_poll:")
    a("buffer_load_dword v5, v4, s[24:27], s50 offen sc1")
    a("s_waitcnt vmcnt(0)")
    a("v_readfirstlane_b32 s52, v5")
    a("s_cmp_ge_u32 s52, 14")
    a("s_cbranch_scc1 FL_go")
    a("s_sleep 16")
    a("s_branch FL_poll")
    a("FL_go:")
    a.hist = []
    a("s_barrier")
    stamp_mid(a, 1, "B")
    a("s_cmp_lt_u32 s46, 4")
    a("s_cbranch_scc1 F_compute")
    a("s_sub_u32 s46, s46, 4")
    a("v_and_b32 v2, 3, v2")
    a("v_lshrrev_b32 v3, 4, v1")
    a("v_lshl_add_u32 v4, v2, 2, v3")
    a("v_and_b32 v5, 15, v1")
    a("v_xor_b32 v4, v4, v5")
    a("v_lshlrev_b32 v4, 4, v4")
    a("v_mul_u32_u24 v5, 3584, v3")
    a("v_add_u32 v10, v4, v5")
    a("v_and_b32 v4, 1, v3")
    a("v_lshlrev_b32 v4, 2, v4")
    a("v_and_b32 v5, 7, v1")
    a("v_xor_b32 v4, v4, v5")
    a("v_lshlrev_b32 v4, 4, v4")
    a("v_lshrrev_b32 v5, 3, v1")
    a("v_lshl_add_u32 v11, v5, 10, v4")
    a("s_lshl_b32 s48, s44, 6")
    a("s_lshl_b32 s50, s46, 2")
    a("s_add_u32 s48, s48, s50")
    a("s_mul_i32 s48, s48, 3584")
    a(f"s_add_u32 s48, s48, {hex(HH)}")
    a("s_lshl_b32 s49, s46, 13")
    a("s_lshl_b32 s50, s45, 7")
    a("s_add_u32 s49, s49, s50")
    a("s_lshl_b32 s51, s46, 10")
    a(f"s_add_u32 s47, s51, {5*16384}")
    a("s_lshr_b32 s60, s41, 3")
    a("s_lshl_b32 s60, s60, 1")
    a("s_add_u32 s60, s60, s45")
    a("s_lshl_b32 s60, s60, 1")
    a("s_sub_u32 s61, s60, 14")
    a("s_cmp_ge_u32 s60, 14")
    a("s_cselect_b32 s60, s61, s60")
    a("s_mov_b32 s61, s60")
    a("s_mov_b32 s65, 0")
    srd(a, 28, 8, 1792 * 512 * 2)

    def adv():
        a("s_add_u32 s51, s51, 16384")
        a(f"s_sub_u32 s66, s51, {5*16384}")
        a("s_cmp_ge_u32 s51, s47")
        a("s_cselect_b32 s51, s66, s51")

    def itemA():
        a("s_lshl_b32 s62, s60, 8")
        a("s_add_u32 s62, s62, s48")
        for jj in range(4):
            a(f"s_add_u32 s52, s62, {jj*16*3584}")
            a(f"s_add_u32 m0, s51, {jj*4096}")
            a("buffer_load_dwordx4 v10, s[24:27], s52 offen sc1 lds")
        a("s_add_u32 s60, s60, 1")
        a("s_cmp_eq_u32 s60, 14")
        a("s_cselect_b32 s60, 0, s60")
        adv()

    def itemB():
        a("s_lshl_b32 s63, s61, 17")
        a("s_add_u32 s63, s63, s49")
        for jj in range(4):
            a(f"s_add_u32 s52, s63, {(jj*32)*1024}")
            a(f"s_add_u32 m0, s51, {jj*4096}")
            a("buffer_load_dwordx4 v11, s[28:31], s52 offen lds")
        a("s_add_u32 s61, s61, 1")
        a("s_cmp_eq_u32 s61, 14")
        a("s_cselect_b32 s61, 0, s61")
        adv()

    itemA()
    a("s_branch FL_pair")
    a("FL_loop:")
    a("s_waitcnt vmcnt(4)")
    a("s_barrier")
    a("FL_pair:")
    a.hist = []
    itemB()
    itemA()
    a("s_add_u32 s65, s65, 1")
    a(f"s_cmp_lt_u32 s65, {NKS-1}")
    a("s_cbranch_scc1 FL_loop")
    a("s_waitcnt vmcnt(4)")
    a("s_barrier")
    itemB()
    a("s_waitcnt vmcnt(0)")
    a("s_barrier")
    endpgm(a, 0)
    a("F_compute:")
    a.hist = []
    a("v_and_b32 v4, 15, v0")
    a("v_lshrrev_b32 v5, 4, v0")
    a("v_lshlrev_b32 v6, 3, v4")
    a("v_lshl_add_u32 v18, v5, 12, v6")
    a("s_lshl_b32 s53, s44, 16")
    a("s_lshl_b32 s50, s45, 7")
    a("s_add_u32 s53, s53, s50")
    a("v_lshlrev_b32 v7, 3, v5")
    a("v_lshl_add_u32 v19, v4, 14, v7")
    a("s_lshl_b32 s54, s45, 18")
    a("s_lshl_b32 s55, s44, 7")
    a("s_add_u32 s54, s54, s55")
    a(f"s_add_u32 s54, s54, {hex(ST)}")
    srd(a, 32, 10, 512 * 2)
    srd(a, 36, 6, 2048 * 512 * 2)
    srd(a, 56, 12, 2048 * 512 * 2)
    for jj in range(4):
        a(f"buffer_load_dwordx2 v[{24+2*jj}:{25+2*jj}], v18, s[36:39], s53 offen offset:{1024*jj}")
    a("buffer_load_dwordx2 v[10:11], v6, s[32:35], s50 offen")
    a("v_and_b32 v4, 31, v1")
    a("v_lshrrev_b32 v5, 5, v1")
    a("v_lshl_add_u32 v6, v2, 2, v5")
    a("v_and_b32 v7, 15, v1")
    a("v_xor_b32 v8, v6, v7")
    a("v_lshlrev_b32 v8, 4, v8")
    a("v_lshl_add_u32 v12, v4, 8, v8")
    a("v_xor_b32 v13, 32, v12")
    a("v_bfe_u32 v4, v1, 2, 2")
    a("v_lshl_add_u32 v6, v5, 3, v4")
    a("v_lshl_add_u32 v6, v2, 5, v6")
    a("v_lshlrev_b32 v6, 7, v6")
    a("v_bfe_u32 v7, v1, 4, 1")
    a("v_lshl_add_u32 v6, v7, 5, v6")
    a("v_and_b32 v7, 3, v1")
    a("v_lshl_add_u32 v6, v7, 3, v6")
    a("v_lshrrev_b32 v7, 1, v4")
    a("v_lshl_add_u32 v14, v7, 6, v6")
    a("v_xor_b32 v15, 64, v14")
    for r in range(64, 128, 2):
        a(f"v_mov_b64 v[{r}:{r+1}], 0")
    PW = 16 * 1056
    a("v_and_b32 v4, 31, v1")
    a("v_mul_u32_u24 v6, 528, v5")
    a("v_lshl_add_u32 v4, v4, 4, v6")
    a(f"v_mul_u32_u24 v6, {PW}, v2")
    a("v_add_u32 v16, v4, v6")
    a("v_bfe_u32 v5, v0, 3, 1")
    a("v_lshrrev_b32 v6, 7, v0")
    a("v_lshl_add_u32 v5, v5, 1, v6")
    a("v_bfe_u32 v6, v0, 1, 2")
    a("v_lshl_add_u32 v5, v5, 2, v6")
    a("v_mul_u32_u24 v5, 1056, v5")
    a("v_and_b32 v6, 1, v0")
    a("v_mul_u32_u24 v6, 528, v6")
    a("v_add_u32 v5, v5, v6")
    a("v_bfe_u32 v6, v0, 4, 3")
    a("v_lshl_add_u32 v17, v6, 6, v5")
    a("s_mov_b32 s60, 0")
    a("s_mov_b32 s65, 0")
    ACC = lambda di, mi: 64 + 32 * di + 16 * mi
    XF = lambda s, mi: 32 + 16 * s + 4 * mi
    WF = lambda s, di: 40 + 16 * s + 4 * di
    a("FC_loop:")
    a("s_add_u32 s61, s60, 16384")
    a(f"s_cmp_eq_u32 s61, {5*16384}")
    a("s_cselect_b32 s61, 0, s61")
    for i in range(2):
        a(f"v_add_u32 v{20+i}, s60, v{12+i}")
        a(f"v_add_u32 v{22+i}, s61, v{14+i}")
    a("s_add_u32 s60, s61, 16384")
    a(f"s_cmp_eq_u32 s60, {5*16384}")
    a("s_cselect_b32 s60, 0, s60")
    a("s_barrier")
    if PROF:
        a("s_cmp_lg_u32 s65, 0")
        a("s_cbranch_scc1 FC_nostamp")
        stamp_mid(a, 0, "C")
        a("FC_nostamp:")
    for u in range(2):
        for mi in range(2):
            a(f"ds_read_b128 v[{XF(u,mi)}:{XF(u,mi)+3}], v{20+u} offset:{8192*mi}")
        for di in range(2):
            for hf in range(2):
                a(f"ds_read_b64_tr_b16 v[{WF(u,di)+2*hf}:{WF(u,di)+2*hf+1}], v{22+di} offset:{(16*u+4*hf)*128}")
    a("s_add_u32 s65, s65, 1")
    for u in range(2):
        a(f"s_waitcnt lgkmcnt({6*(1-u)})")
        for di in range(2):
            for mi in range(2):
                c = ACC(di, mi)
                a(f"v_mfma_f32_32x32x16_bf16 v[{c}:{c+15}], v[{WF(u,di)}:{WF(u,di)+3}], v[{XF(u,mi)}:{XF(u,mi)+3}], v[{c}:{c+15}]")
    a(f"s_cmp_lt_u32 s65, {NKS}")
    a("s_cbranch_scc1 FC_loop")
    stamp_mid(a, 1, "C")
    a("s_cmp_lg_u32 s46, 0")
    a("s_cbranch_scc1 FC_go")
    a("v_mov_b32 v4, 0")
    a(f"s_mov_b32 s61, {hex(CNT)}")
    a("FC_poll:")
    a("buffer_load_dword v5, v4, s[24:27], s61 offen sc1")
    a("s_waitcnt vmcnt(0)")
    a("v_readfirstlane_b32 s60, v5")
    a(f"s_cmp_ge_u32 s60, {NCV}")
    a("s_cbranch_scc1 FC_go")
    a("s_sleep 16")
    a("s_branch FC_poll")
    a("FC_go:")
    a("s_barrier")
    a("s_add_u32 s55, s54, 8192")
    a("v_add_u32 v7, 4096, v19")
    a("buffer_load_dwordx2 v[40:41], v19, s[24:27], s54 offen sc1")
    a("buffer_load_dwordx2 v[42:43], v7, s[24:27], s54 offen sc1")
    a("buffer_load_dwordx2 v[44:45], v19, s[24:27], s55 offen sc1")
    a("buffer_load_dwordx2 v[46:47], v7, s[24:27], s55 offen sc1")
    a("s_nop 15")
    a("s_nop 15")
    a("s_nop 15")
    a.hist = []
    for q in range(16):
        a(f"ds_write_b128 v16, v[{64+4*q}:{67+4*q}] offset:{1056*q}")
    for p in range(2):
        a(f"v_lshlrev_b32 v{20+2*p}, 16, v{10+p}")
        a(f"v_and_b32 v{21+2*p}, s64, v{10+p}")
    a("s_waitcnt lgkmcnt(0)")
    a("s_barrier")
    for w in range(4):
        for jj in range(4):
            a(f"ds_read_b128 v[{64+16*w+4*jj}:{67+16*w+4*jj}], v17 offset:{PW*w + 16*jj}")
    a("s_waitcnt vmcnt(0)")
    X = lambda jj, dd: 32 + 4 * jj + dd
    S = lambda jj, dd: 48 + 4 * jj + dd
    for dd in range(4):
        for p in range(2):
            a(f"v_lshlrev_b32 v{S(2*p,dd)}, 16, v{40+2*dd+p}")
            a(f"v_and_b32 v{S(2*p+1,dd)}, s64, v{40+2*dd+p}")
    for jj in range(4):
        for p in range(2):
            a(f"v_lshlrev_b32 v{X(jj,2*p)}, 16, v{24+2*jj+p}")
            a(f"v_and_b32 v{X(jj,2*p+1)}, s64, v{24+2*jj+p}")
    a("s_waitcnt lgkmcnt(8)")
    for j in range(8):
        a(f"v_pk_add_f32 v[{64+2*j}:{65+2*j}], v[{64+2*j}:{65+2*j}], v[{80+2*j}:{81+2*j}]")
    a("s_waitcnt lgkmcnt(0)")
    for j in range(8):
        a(f"v_pk_add_f32 v[{96+2*j}:{97+2*j}], v[{96+2*j}:{97+2*j}], v[{112+2*j}:{113+2*j}]")
    for j in range(8):
        a(f"v_pk_add_f32 v[{64+2*j}:{65+2*j}], v[{64+2*j}:{65+2*j}], v[{96+2*j}:{97+2*j}]")
    O, T = 64, 80

    def rnd(base):
        for j in range(8):
            a(f"v_cvt_pk_bf16_f32 v{T+j}, v{base+2*j}, v{base+2*j+1}")
        for j in range(8):
            a(f"v_lshlrev_b32 v{base+2*j}, 16, v{T+j}")
            a(f"v_and_b32 v{base+2*j+1}, s64, v{T+j}")

    rnd(O)
    for j in range(8):
        a(f"v_pk_add_f32 v[{O+2*j}:{O+2*j+1}], v[{O+2*j}:{O+2*j+1}], v[{20+2*(j&1)}:{21+2*(j&1)}]")
    rnd(O)
    a("s_mov_b32 s60, 0xbfb8aa3b")
    for j in range(8):
        a(f"v_pk_mul_f32 v[{96+2*j}:{97+2*j}], v[{O+2*j}:{O+2*j+1}], s[60:61] op_sel_hi:[1,0]")
    for r in range(16):
        a(f"v_exp_f32 v{96+r}, v{96+r}")
    for j in range(8):
        a(f"v_pk_add_f32 v[{96+2*j}:{97+2*j}], v[{96+2*j}:{97+2*j}], 1.0 op_sel_hi:[1,0]")
    for r in range(16):
        a(f"v_rcp_f32 v{96+r}, v{96+r}")
    for j in range(8):
        a(f"v_pk_mul_f32 v[{O+2*j}:{O+2*j+1}], v[{O+2*j}:{O+2*j+1}], v[{96+2*j}:{97+2*j}]")
    rnd(O)
    for j in range(8):
        a(f"v_pk_mul_f32 v[{O+2*j}:{O+2*j+1}], v[{O+2*j}:{O+2*j+1}], v[{48+2*j}:{49+2*j}]")
    rnd(O)
    for j in range(8):
        a(f"v_pk_add_f32 v[{O+2*j}:{O+2*j+1}], v[{O+2*j}:{O+2*j+1}], v[{32+2*j}:{33+2*j}]")
    for j in range(8):
        a(f"v_cvt_pk_bf16_f32 v{T+j}, v{O+2*j}, v{O+2*j+1}")
    for jj in range(4):
        a(f"buffer_store_dwordx2 v[{T+2*jj}:{T+2*jj+1}], v18, s[56:59], s53 offen offset:{1024*jj}")
    endpgm(a, 0)
    a("F_done:")
    a("s_endpgm")
    return a, f"; @launch kernel=fin_kernel grid=({NCV+NG2},1,1) block=(512,1,1) lds={LDS_FIN}"
```
